```python
import torch

def _softmax(x, axis=-1):
    return torch.softmax(x, dim=axis)
def _gelu(x):
    return torch.nn.functional.gelu(x, approximate="tanh")
def _silu(x):
    return torch.nn.functional.silu(x)
def _sigmoid(x):
    return torch.sigmoid(x)
def _layernorm(x, axis=-1, eps=1e-5):
    m = x.mean(dim=axis, keepdim=True)
    v = x.var(dim=axis, keepdim=True, unbiased=False)
    return (x - m) / torch.sqrt(v + eps)
def _scatter_add(tgt, idx, src, axis=0):
    return tgt.clone().index_add_(axis, idx, src)
def _segment_sum(src, seg, n):
    out = torch.zeros((n,) + src.shape[1:], dtype=src.dtype)
    return out.index_add_(0, seg, src)
def _pad(x, pw):
    flat = tuple(v for pair in reversed(pw) for v in pair)
    return torch.nn.functional.pad(x, flat)

kernel_name = 'standalone__dcn_v2_cross__recsys'

def setup_inputs():

    _w = (lambda a: (lambda t: t.to(torch.bfloat16) if t.is_floating_point() else t)(torch.as_tensor(a)))
    B, F, D, L = 4096, 100, 32, 3
    Din = min(F * D, 1024)
    return {
        "x0": _w((lambda *s: torch.randn(*s, dtype=torch.bfloat16) * 0.05)(B, Din)),
        "ws": _w((lambda *s: torch.randn(*s, dtype=torch.bfloat16) * 0.05)(L, Din, Din)),
        "bs": _w((lambda *s: torch.randn(*s, dtype=torch.bfloat16) * 0.05)(L, Din)),
    }

def reference(x0, ws, bs):
    x = x0
    for l in range(ws.shape[0]):
        x = x0 * (x @ ws[l] + bs[l]) + x
    return x
```

```python
import sys
from collections import defaultdict

OPT = dict(
    D=4,
    BPOS=16,
    POLL_AHEAD=56,
    POLL_CHK=12,
    FLAG_DELAY=40,
    STAMP=0,
)
for a in sys.argv[2:]:
    k, v = a.split("=")
    OPT[k] = int(v)

D = OPT["D"]
NWF = D + 2

ACC = 64
X0F = 128
OWN = 192
WF = 224
TMPN = 248
TMPN2 = 34
V_LANE16 = 1
V_LANE16B = 2
V_TR = 3
V_WD = 9
V_FLAGST = 13
V_POLLOFF = 14
V_POLL = 15
V_BT = 16
V_BT2 = 56
V_BOFF = 24
V_OOFF = 25
V_ET = 26
V_XR = 34
V_XD = 42
V_T0 = 46
V_ATOM = 54
V_ONE = 55

S_X0, S_W, S_B, S_OUT, S_WS, S_DBG = 4, 8, 12, 16, 20, 24
S_RB, S_C, S_WV = 28, 29, 30
S_WROW = 32
S_XOFF = 34
S_LDSW = 42
S_T = 44
S_ROW0B = 52
S_WROW0 = 54
S_BOFF = 56
S_OUTOFF = 57
S_MASK = 58
S_VCC = 60
S_TS = 62

XB = {1: 16 << 20, 2: 24 << 20}
UNIT = 32768
NUNIT = 5


def xf_reg(q, j, s):
    if j == 0:
        b = OWN + (q * 2 + s) * 4
        return f"v[{b}:{b+3}]"
    b = ((q * 7 + (j - 1)) * 2 + s) * 4
    return f"a[{b}:{b+3}]"


class G:
    def __init__(s):
        s.L = []
        s.ldsq = []
        s.vmq = []
        s.cnt = 0

    def e(s, txt):
        s.L.append("    " + txt)
        s.cnt += 1

    def label(s, name):
        s.L.append(name + ":")

    def c(s, txt):
        s.L.append("    ; " + txt)

    def lds(s, txt, tag=None):
        s.e(txt)
        s.ldsq.append(tag)

    def vm(s, txt, tag=None):
        s.e(txt)
        s.vmq.append(tag)

    def wait(s, vm=None, lds=None):
        parts = []
        if vm is not None and vm in s.vmq:
            idx = len(s.vmq) - 1 - s.vmq[::-1].index(vm)
            n = len(s.vmq) - 1 - idx
            s.vmq = s.vmq[idx + 1:]
            parts.append(f"vmcnt({min(n, 63)})")
        if lds is not None and lds in s.ldsq:
            idx = len(s.ldsq) - 1 - s.ldsq[::-1].index(lds)
            n = len(s.ldsq) - 1 - idx
            s.ldsq = s.ldsq[idx + 1:]
            parts.append(f"lgkmcnt({min(n, 15)})")
        if parts:
            s.e("s_waitcnt " + " ".join(parts))

    def wait_all(s):
        s.e("s_waitcnt vmcnt(0) lgkmcnt(0)")
        s.vmq = []
        s.ldsq = []


ORD = [
    [(0, 0), (0, 1), (0, 2), (0, 3), (1, 0), (1, 1), (1, 2), (1, 3)],
    [(0, 0), (0, 1), (1, 0), (0, 2), (0, 3), (1, 1), (1, 2), (1, 3)],
    [(0, 0), (1, 0), (0, 1), (1, 1), (0, 2), (1, 2), (0, 3), (1, 3)],
]
NBLK = 24
NT = NBLK * 32


def gen():
    g = G()
    e = g.e
    hdr = """; DCN-v2 cross network, fused 3-layer kernel (generated by gen.py)
; @launch grid=(256,1,1) block=(256,1,1) lds=163840
.amdgcn_target "amdgcn-amd-amdhsa--gfx950"
.text
.globl standalone__dcn_v2_cross__recsys_kernel
.p2align 8
.type standalone__dcn_v2_cross__recsys_kernel,@function
standalone__dcn_v2_cross__recsys_kernel:"""
    g.L.append(hdr)
    slow = []

    e("s_cmp_ge_u32 s2, 256")
    e("s_cbranch_scc1 L_end")
    e("s_load_dwordx4 s[44:47], s[0:1], 0")
    e("s_load_dwordx4 s[48:51], s[0:1], 16")
    e("s_load_dwordx4 s[64:67], s[0:1], 32")
    e("v_lshrrev_b32 v46, 6, v0")
    e("v_and_b32 v0, 63, v0")
    e("s_and_b32 s68, s2, 7")
    e("s_lshr_b32 s69, s2, 3")
    e(f"v_readfirstlane_b32 s{S_WV}, v46")
    e(f"s_and_b32 s{S_C}, s69, 7")
    e("s_lshr_b32 s69, s69, 3")
    e("s_lshl_b32 s68, s68, 2")
    e(f"s_add_u32 s{S_RB}, s68, s69")
    e("s_waitcnt lgkmcnt(0)")
    for (S, lo, size) in ((S_X0, 44, 8 << 20), (S_W, 46, 6 << 20), (S_B, 48, 6144), (S_OUT, 50, 8 << 20),
                          (S_DBG, 64, 256), (S_WS, 66, 256 << 20)):
        e(f"s_mov_b32 s{S}, s{lo}")
        e(f"s_and_b32 s{S+1}, s{lo+1}, 0xffff")
        e(f"s_mov_b32 s{S+2}, {size}")
        e(f"s_mov_b32 s{S+3}, 0x00020000")
    e(f"s_mov_b32 s{S_MASK}, 0xffff0000")
    e("s_mov_b32 s74, 200000")
    e(f"s_lshl_b32 s{S_LDSW}, s{S_WV}, 13")
    e(f"s_lshl_b32 s68, s{S_RB}, 7")
    e(f"s_lshl_b32 s69, s{S_WV}, 5")
    e("s_add_u32 s68, s68, s69")
    e(f"s_lshl_b32 s{S_ROW0B}, s68, 11")
    e(f"s_lshl_b32 s{S_BOFF}, s{S_C}, 8")
    e(f"s_add_u32 s{S_OUTOFF}, s{S_ROW0B}, s{S_BOFF}")
    e(f"s_lshl_b32 s68, s{S_RB}, 2")
    e(f"s_add_u32 s68, s68, s{S_WV}")
    e("s_lshl_b32 s69, s68, 16")
    for j in range(8):
        e(f"s_add_u32 s70, s{S_C}, {j}")
        e("s_and_b32 s70, s70, 7")
        e("s_lshl_b32 s70, s70, 13")
        e(f"s_add_u32 s{S_XOFF+j}, s69, s70")
    for i in range(2):
        e(f"s_lshl_b32 s70, s{S_WV}, 1")
        e(f"s_add_u32 s70, s70, {i}")
        e(f"s_lshl_b32 s71, s70, 16")
        e(f"s_add_u32 s{S_WROW0+i}, s71, s{S_BOFF}")
        e(f"s_add_u32 s70, s70, s{S_C}")
        e("s_and_b32 s70, s70, 7")
        e("s_lshl_b32 s70, s70, 18")
        e(f"s_add_u32 s{S_WROW+i}, s70, s{S_BOFF}")
    e("s_lshl_b32 s72, s68, 7")
    e(f"s_lshl_b32 s73, s{S_C}, 2")
    e("s_add_u32 s73, s73, s72")
    e(f"v_lshlrev_b32 v{V_LANE16}, 4, v0")
    e(f"v_add_u32 v{V_LANE16B}, 4096, v{V_LANE16}")
    T = V_T0
    e(f"v_lshrrev_b32 v{T}, 5, v0")
    e(f"v_and_b32 v{T+1}, 31, v0")
    e(f"v_lshrrev_b32 v{T+2}, 2, v0")
    e(f"v_and_b32 v{T+2}, 3, v{T+2}")
    e(f"v_and_b32 v{T+3}, 3, v0")
    e(f"v_lshrrev_b32 v{T+4}, 4, v0")
    e(f"v_and_b32 v{T+4}, 1, v{T+4}")
    e(f"v_lshlrev_b32 v{V_FLAGST}, 5, v0")
    e(f"v_add_u32 v{V_FLAGST}, s73, v{V_FLAGST}")
    e(f"v_mov_b32 v{T+5}, 0x7ffffff0")
    e("v_cmp_gt_u32 vcc, 4, v0")
    e("s_nop 1")
    e(f"v_cndmask_b32 v{T+6}, v{T+5}, v{V_FLAGST}, vcc")
    e("v_cmp_gt_u32 vcc, 1, v0")
    e("s_nop 1")
    e(f"v_cndmask_b32 v{V_FLAGST}, v{T+5}, v{V_FLAGST}, vcc")
    e(f"v_mov_b32 v{T+7}, 0")
    g.vm(f"buffer_store_dword v{T+7}, v{T+6}, s[{S_WS}:{S_WS+3}], 0 offen sc0 sc1", "fz")
    e(f"v_and_b32 v{V_POLLOFF}, 7, v0")
    e(f"v_lshlrev_b32 v{V_POLLOFF}, 2, v{V_POLLOFF}")
    e(f"v_add_u32 v{V_POLLOFF}, s72, v{V_POLLOFF}")
    e(f"s_lshl_b32 s70, s{S_RB}, 2")
    e(f"v_mov_b32 v{V_ATOM}, s70")
    e(f"s_lshl_b32 s71, s{S_WV}, 6")
    e(f"v_or_b32 v{T+7}, s71, v0")
    e(f"v_cmp_eq_u32 vcc, 0, v{T+7}")
    e("s_nop 1")
    e(f"v_cndmask_b32 v{V_ATOM}, v{T+5}, v{V_ATOM}, vcc")
    e(f"v_mov_b32 v{V_ONE}, 1")
    e(f"v_lshrrev_b32 v{T+5}, 3, v0")
    e(f"v_and_b32 v{T+6}, 7, v0")
    e(f"v_lshrrev_b32 v{T+7}, 4, v0")
    e(f"v_and_b32 v{T+7}, 1, v{T+7}")
    e(f"v_lshlrev_b32 v{T+7}, 2, v{T+7}")
    e(f"v_xor_b32 v{T+6}, v{T+6}, v{T+7}")
    e(f"v_lshlrev_b32 v{T+6}, 4, v{T+6}")
    e(f"v_lshlrev_b32 v{T+5}, 11, v{T+5}")
    e(f"v_add_u32 v{V_WD}, v{T+5}, v{T+6}")
    for i in range(1, 4):
        e(f"v_add_u32 v{V_WD+i}, {i*15360}, v{V_WD}")
    e(f"v_lshrrev_b32 v{T+5}, 1, v{T+2}")
    e(f"v_lshlrev_b32 v{T+5}, 6, v{T+5}")
    e(f"v_lshlrev_b32 v{T+6}, 5, v{T+4}")
    e(f"v_add_u32 v{T+5}, v{T+5}, v{T+6}")
    e(f"v_lshlrev_b32 v{T+6}, 3, v{T+3}")
    e(f"v_add_u32 v{T+5}, v{T+5}, v{T+6}")
    e(f"v_lshlrev_b32 v{T+6}, 7, v{T+2}")
    e(f"v_add_u32 v{T+5}, v{T+5}, v{T+6}")
    e(f"v_lshlrev_b32 v{T+6}, 10, v{T}")
    e(f"v_add_u32 v{V_TR}, v{T+5}, v{T+6}")
    e(f"v_xor_b32 v{V_TR+1}, 64, v{V_TR}")
    for b in (1, 2):
        e(f"v_add_u32 v{V_TR+2*b}, {b*65536}, v{V_TR}")
        e(f"v_add_u32 v{V_TR+2*b+1}, {b*65536}, v{V_TR+1}")
    e(f"v_lshlrev_b32 v{V_BOFF}, 3, v{T}")
    e(f"v_lshlrev_b32 v{V_OOFF}, 11, v{T+1}")
    e(f"v_lshlrev_b32 v{T+6}, 4, v{T}")
    e(f"v_add_u32 v{V_OOFF}, v{V_OOFF}, v{T+6}")
    e(f"v_lshrrev_b32 v{T+5}, 4, v0")
    e(f"v_and_b32 v{T+6}, 15, v0")
    e(f"v_xor_b32 v{T+6}, v{T+6}, v{T+5}")
    e(f"v_lshlrev_b32 v{T+5}, 11, v{T+5}")
    for i in range(4):
        e(f"v_xor_b32 v{T+7}, {4*i}, v{T+6}")
        e(f"v_lshlrev_b32 v{T+7}, 4, v{T+7}")
        e(f"v_add_u32 v{T+7}, v{T+7}, v{T+5}")
        e(f"v_add_u32 v{V_XD+i}, {i*(8192-1024)}, v{T+7}")
    e(f"v_and_b32 v{T+5}, 15, v{T+1}")
    e(f"v_xor_b32 v{T+6}, v{T+5}, v{T}")
    e(f"v_lshlrev_b32 v{T+6}, 4, v{T+6}")
    e(f"v_lshlrev_b32 v{T+7}, 8, v{T+1}")
    e(f"v_add_u32 v{T+7}, s{S_LDSW}, v{T+7}")
    e(f"v_add_u32 v{T+6}, v{T+6}, v{T+7}")
    for jj in range(8):
        e(f"v_xor_b32 v{V_XR+jj}, {32*jj}, v{T+6}")
    e(f"v_lshlrev_b32 v{T+5}, 4, v{T+5}")
    e(f"v_add_u32 v{V_ET}, v{T+5}, v{T+7}")
    e(f"v_lshlrev_b32 v{T+5}, 3, v{T}")
    e(f"v_add_u32 v{V_ET}, v{V_ET}, v{T+5}")

    def w_dma(beta, part):
        l, b = divmod(beta, 8)
        P, q = ORD[l][b]
        unit = beta % NUNIT
        ops = []
        if l == 0:
            const = q * 256 * 2048 + P * 128
            base = S_WROW0 + part
        else:
            const = l * (2 << 20) + q * 32 * 2048 + P * 128
            base = S_WROW + part
        ops.append(lambda: e(f"s_add_u32 m0, s{S_LDSW}, {unit*UNIT + part*4096}"))
        ops.append(lambda: e(f"s_add_u32 s{S_T}, s{base}, {const}"))
        for i in range(4):
            off = f" offset:{i*1024}" if i else ""
            ops.append(lambda i=i, off=off: g.vm(
                f"buffer_load_dwordx4 v{V_WD+i}, s[{S_W}:{S_W+3}], s{S_T} offen{off} lds", ("w", beta)))
        return ops

    def x0_dma(unit, kbyte_sreg_expr, tag):
        for half in range(2):
            e(f"s_add_u32 m0, s{S_LDSW}, {unit*UNIT + half*4096}")
            if isinstance(kbyte_sreg_expr, int):
                e(f"s_add_u32 s{S_T}, s{S_ROW0B}, {kbyte_sreg_expr + half*16*2048}")
            else:
                e(f"s_add_u32 s{S_T}, s{S_ROW0B}, {kbyte_sreg_expr}")
                if half:
                    e(f"s_add_u32 s{S_T}, s{S_T}, {16*2048}")
            for i in range(4):
                off = f" offset:{i*1024}" if i else ""
                g.vm(f"buffer_load_dwordx4 v{V_XD+i}, s[{S_X0}:{S_X0+3}], s{S_T} offen{off} lds", tag)

    def x0_read(unit, q, half):
        for jj in range(8):
            j = 4 * half + jj // 2
            s_ = jj % 2
            base = unit * UNIT
            if base < 65536:
                g.lds(f"ds_read_b128 {xf_reg(q, j, s_)}, v{V_XR+jj} offset:{base}", "x0r")
            else:
                e(f"v_add_u32 v{V_T0}, {base & ~0xffff}, v{V_XR+jj}")
                g.lds(f"ds_read_b128 {xf_reg(q, j, s_)}, v{V_T0} offset:{base & 0xffff}", "x0r")

    for part in range(2):
        for op in w_dma(0, part):
            op()
    pages = [(q, h) for q in range(4) for h in range(2)]
    for n in range(4):
        q, h = pages[n]
        x0_dma(1 + n, q * 512 + h * 256, ("x0", n))
    for n in range(4):
        q, h = pages[n]
        g.wait(vm=("x0", n))
        x0_read(1 + n, q, h)
    e("s_waitcnt lgkmcnt(0)")
    g.ldsq = []
    for n in range(4, 8):
        q, h = pages[n]
        x0_dma(1 + n - 4, q * 512 + h * 256, ("x0", n))
    for n in range(4, 8):
        q, h = pages[n]
        g.wait(vm=("x0", n))
        x0_read(1 + n - 4, q, h)
    e("s_waitcnt lgkmcnt(0)")
    g.ldsq = []
    x0_dma(1, f"s{S_BOFF}", "x0own")
    g.wait(vm="x0own")
    for pc in range(16):
        i, gg = divmod(pc, 4)
        e(f"v_xor_b32 v{V_T0}, {16*pc}, v{V_ET}")
        g.lds(f"ds_read_b64 v[{V_BT}:{V_BT+1}], v{V_T0} offset:{UNIT}", "own")
        g.wait(lds="own")
        r = X0F + i * 16 + gg * 4
        e(f"v_lshlrev_b32 v{r}, 16, v{V_BT}")
        e(f"v_and_b32 v{r+1}, s{S_MASK}, v{V_BT}")
        e(f"v_lshlrev_b32 v{r+2}, 16, v{V_BT+1}")
        e(f"v_and_b32 v{r+3}, s{S_MASK}, v{V_BT+1}")

    def bias_load(l, i):
        ops = []
        BT = V_BT if i % 2 == 0 else V_BT2
        for gg in range(4):
            ops.append(lambda gg=gg: g.vm(
                f"buffer_load_dwordx2 v[{BT+2*gg}:{BT+2*gg+1}], v{V_BOFF}, s[{S_B}:{S_B+3}], s{S_T+1+l} offen offset:{64*i+16*gg}",
                ("b", l, i)))
        return ops

    def bias_init(l, i):
        ops = [lambda: g.wait(vm=("b", l, i))]
        BT = V_BT if i % 2 == 0 else V_BT2
        for gg in range(4):
            r = ACC + i * 16 + gg * 4
            ops.append(lambda r=r, gg=gg: e(f"v_lshlrev_b32 v{r}, 16, v{BT+2*gg}"))
            ops.append(lambda r=r, gg=gg: e(f"v_and_b32 v{r+1}, s{S_MASK}, v{BT+2*gg}"))
            ops.append(lambda r=r, gg=gg: e(f"v_lshlrev_b32 v{r+2}, 16, v{BT+2*gg+1}"))
            ops.append(lambda r=r, gg=gg: e(f"v_and_b32 v{r+3}, s{S_MASK}, v{BT+2*gg+1}"))
        return ops

    for l in range(3):
        e(f"s_add_u32 s{S_T+1+l}, s{S_BOFF}, {l*2048}")
    for i in range(4):
        for op in bias_load(0, i):
            op()
        for op in bias_init(0, i):
            op()
    g.wait_all()
    e("s_barrier")
    g.vm(f"buffer_atomic_add v{V_ONE}, v{V_ATOM}, s[{S_DBG}:{S_DBG+3}], 0 offen sc1", "atom")
    for beta in (1, 2, 3):
        for part in range(2):
            for op in w_dma(beta, part):
                op()

    fill = defaultdict(list)

    def at(t, op):
        fill[t].append(op)

    def spread(t0, ops, per=2):
        for n, op in enumerate(ops):
            at(t0 + n // per, op)
        return t0 + (len(ops) + per - 1) // per

    mf = [None] * NT
    first_use = {}
    last_use = {}
    done = {}
    for beta in range(NBLK):
        l, b = divmod(beta, 8)
        P, q = ORD[l][b]
        for ns in range(2):
            i = 2 * P + ns
            for j in range(8):
                for s_ in range(2):
                    t = beta * 32 + ns * 16 + j * 2 + s_
                    mf[t] = (l, beta, P, q, ns, i, j, s_)
                    first_use.setdefault((l, q), t)
                    last_use[(l, q)] = t
                    done[(l, i)] = t
    BPOS = OPT["BPOS"]
    for beta in range(NBLK):
        t = beta * 32 + BPOS
        if beta + 1 < NBLK:
            at(t, lambda beta=beta: g.wait(vm=("w", beta + 1)))
            at(t, lambda: e("s_barrier"))
        if beta + 4 < NBLK:
            ops = w_dma(beta + 4, 0) + w_dma(beta + 4, 1)
            for n, op in enumerate(ops):
                at(t + 1 + n, op)
    def switch_tr():
        e(f"v_lshrrev_b32 v{V_T0}, 5, v0")
        e(f"v_lshlrev_b32 v{V_T0}, 9, v{V_T0}")
        for k in range(6):
            e(f"v_sub_u32 v{V_TR+k}, v{V_TR+k}, v{V_T0}")
    switch_at = 256 - D

    def epi_ops(l, i, dst):
        ops = []
        for d in range(8):
            a0 = ACC + i * 16 + 2 * d
            x0 = X0F + i * 16 + 2 * d
            src = OWN + i * 8 + d
            t0 = V_ET + (d % 4) * 2
            if l == 0:
                ops.append(lambda a0=a0, x0=x0, t0=t0: e(f"v_fma_f32 v{t0}, v{x0}, v{a0}, v{x0}"))
                ops.append(lambda a0=a0, x0=x0, t0=t0: e(f"v_fma_f32 v{t0+1}, v{x0+1}, v{a0+1}, v{x0+1}"))
            else:
                ops.append(lambda src=src, t0=t0: e(f"v_lshlrev_b32 v{t0}, 16, v{src}"))
                ops.append(lambda src=src, t0=t0: e(f"v_and_b32 v{t0+1}, s{S_MASK}, v{src}"))
                ops.append(lambda a0=a0, x0=x0, t0=t0: e(f"v_fma_f32 v{t0}, v{x0}, v{a0}, v{t0}"))
                ops.append(lambda a0=a0, x0=x0, t0=t0: e(f"v_fma_f32 v{t0+1}, v{x0+1}, v{a0+1}, v{t0+1}"))
            ops.append(lambda t0=t0, d=d: e(f"v_cvt_pk_bf16_f32 v{dst+d}, v{t0}, v{t0+1}"))
        return ops

    pollid = [0]
    for l in range(3):
        for i in range(4):
            tc = done[(l, i)] + 4
            own_last = max(t for t in range(l * 256, l * 256 + 256) if mf[t][3] == i and mf[t][6] == 0)
            direct = own_last < tc
            TM = TMPN if i % 2 == 0 else TMPN2
            dst = OWN + i * 8 if direct else TM
            tend = spread(tc, epi_ops(l, i, dst), per=3)
            if l < 2:
                P_ = i // 2
                voff = V_LANE16 if i < 2 else V_LANE16B
                for s_ in range(2):
                    r = dst + 4 * s_
                    off = (i % 2) * 2048 + s_ * 1024
                    at(tend + 1, lambda r=r, off=off, voff=voff, l=l, i=i: (
                        e(f"s_add_u32 s{S_T+4}, s{S_XOFF}, {XB[l+1]}"),
                        g.vm(f"buffer_store_dwordx4 v[{r}:{r+3}], v{voff}, s[{S_WS}:{S_WS+3}], s{S_T+4} offen offset:{off} sc0 sc1",
                             ("st", l, i))))
                tf = tend + 1 + OPT["FLAG_DELAY"]
                at(tf, lambda l=l, i=i: (
                    g.wait(vm=("st", l, i)),
                    e(f"v_mov_b32 v{V_T0+1}, {l+1}"),
                    g.vm(f"buffer_store_dword v{V_T0+1}, v{V_FLAGST}, s[{S_WS}:{S_WS+3}], 0 offen offset:{32*i} sc0 sc1", "fl")))
                if not direct:
                    tm = max(own_last + 1, tend + 2)
                    for d in range(8):
                        at(tm + d // 4, lambda d=d, i=i, TM=TM: e(f"v_mov_b32 v{OWN+i*8+d}, v{TM+d}"))
                spread(tend, bias_load(l + 1, i), per=2)
                spread(tend + 20, bias_init(l + 1, i), per=3)
            else:
                for s_ in range(2):
                    r = dst + 4 * s_
                    at(tend + 2, lambda r=r: (e("s_nop 1"), e(f"v_permlane32_swap_b32 v{r}, v{r+2}"), e(f"v_permlane32_swap_b32 v{r+1}, v{r+3}")))
                    at(tend + 3, lambda r=r, s_=s_, i=i: g.vm(
                        f"buffer_store_dwordx4 v[{r}:{r+3}], v{V_OOFF}, s[{S_OUT}:{S_OUT+3}], s{S_OUTOFF} offen offset:{64*i+32*s_}", "out"))
    for l in (1, 2):
        for q in range(4):
            tfu = first_use[(l, q)]
            tfree = last_use[(l - 1, q)] + 1
            tp = max(tfu - OPT["POLL_AHEAD"], tfree - OPT["POLL_CHK"])
            pid = pollid[0]
            pollid[0] += 1
            first = (l == 1 and q == 0)

            def poll_issue(q=q, pid=pid, first=first):
                if first:
                    g.label(f"L_rdy")
                    e(f"s_lshl_b32 s{S_T+5}, s{S_RB}, 2")
                    e(f"v_mov_b32 v{V_T0+2}, s{S_T+5}")
                    g.vm(f"buffer_load_dword v{V_POLL}, v{V_T0+2}, s[{S_DBG}:{S_DBG+3}], 0 offen sc0 sc1", "rdy")
                    g.wait(vm="rdy")
                    e(f"v_cmp_ne_u32 s[{S_VCC}:{S_VCC+1}], 8, v{V_POLL}")
                    e("s_nop 3")
                    e("s_sub_u32 s74, s74, 1")
                    e("s_cbranch_scc1 L_rdy_out")
                    e(f"s_cmp_lg_u64 s[{S_VCC}:{S_VCC+1}], 0")
                    e("s_cbranch_scc1 L_rdy")
                    g.label("L_rdy_out")
                g.vm(f"buffer_load_dword v{V_POLL}, v{V_POLLOFF}, s[{S_WS}:{S_WS+3}], 0 offen offset:{32*q} sc0 sc1", ("poll", pid))

            def poll_check(l=l, q=q, pid=pid):
                g.wait(vm=("poll", pid))
                e(f"v_cmp_gt_u32 s[{S_VCC}:{S_VCC+1}], {l}, v{V_POLL}")
                e("s_nop 3")
                e(f"s_cmp_lg_u64 s[{S_VCC}:{S_VCC+1}], 0")
                e(f"s_cbranch_scc1 L_slow{pid}")
                g.label(f"L_back{pid}")
                slow.append(f"""L_slow{pid}:
    buffer_load_dword v{V_POLL}, v{V_POLLOFF}, s[{S_WS}:{S_WS+3}], 0 offen offset:{32*q} sc0 sc1
    s_waitcnt vmcnt(0)
    v_cmp_gt_u32 s[{S_VCC}:{S_VCC+1}], {l}, v{V_POLL}
    s_sub_u32 s74, s74, 1
    s_cbranch_scc1 L_back{pid}
    s_nop 1
    s_cmp_lg_u64 s[{S_VCC}:{S_VCC+1}], 0
    s_cbranch_scc1 L_slow{pid}
    s_branch L_back{pid}""")
            at(tp, poll_issue)
            at(tp + OPT["POLL_CHK"], poll_check)
            n = 0
            for j in range(1, 8):
                for s_ in range(2):
                    voff = V_LANE16 if q < 2 else V_LANE16B
                    off = (q % 2) * 2048 + s_ * 1024
                    def ld(l=l, q=q, j=j, s_=s_, voff=voff, off=off):
                        if s_ == 0:
                            e(f"s_add_u32 s{S_T+6}, s{S_XOFF+j}, {XB[l]}")
                        g.vm(f"buffer_load_dwordx4 {xf_reg(q, j, s_)}, v{voff}, s[{S_WS}:{S_WS+3}], s{S_T+6} offen offset:{off} sc0 sc1",
                             ("x", l, q, j))
                    at(tp + OPT["POLL_CHK"] + 1 + n // 2, ld)
                    n += 1

    def wf_regs(t):
        b = WF + (t % NWF) * 4
        return b

    def issue_reads(t):
        l, beta, P, q, ns, i, j, s_ = mf[t]
        unit = beta % NUNIT
        base = unit * UNIT
        vb = V_TR + 2 * (base >> 16) + ns
        b = wf_regs(t)
        for tt in range(2):
            if l == 0:
                off = (32 * j + 16 * s_ + 4 * tt) * 128
            else:
                off = (32 * j + 16 * s_ + 8 * tt) * 128
            off += base & 0xffff
            g.lds(f"ds_read_b64_tr_b16 v[{b+2*tt}:{b+2*tt+1}], v{vb} offset:{off}", ("wf", t))

    for t in range(D):
        issue_reads(t)
    for t in range(NT):
        for op in fill.get(t, []):
            op()
        if t == switch_at:
            switch_tr()
        if t + D < NT:
            issue_reads(t + D)
        l, beta, P, q, ns, i, j, s_ = mf[t]
        vmtag = ("x", l, q, j) if (l > 0 and j > 0) else None
        g.wait(vm=vmtag, lds=("wf", t))
        b = wf_regs(t)
        a = ACC + i * 16
        e(f"v_mfma_f32_32x32x16_bf16 v[{a}:{a+15}], v[{b}:{b+3}], {xf_reg(q, j, s_)}, v[{a}:{a+15}]")
    e("s_nop 15")
    for t in range(NT, NT + 64):
        if t in fill:
            e("s_nop 7")
            for op in fill[t]:
                op()
    extra = [t for t in fill if t >= NT + 64]
    assert not extra, extra
    e("s_waitcnt vmcnt(0)")
    g.label("L_end")
    e("s_endpgm")
    for sl in slow:
        g.L.append(sl)
    g.L.append(""".section .rodata,"a"
.p2align 6
.amdhsa_kernel standalone__dcn_v2_cross__recsys_kernel
  .amdhsa_next_free_vgpr 512
  .amdhsa_next_free_sgpr 102
  .amdhsa_accum_offset 256
  .amdhsa_group_segment_fixed_size 0
  .amdhsa_kernarg_size 48
  .amdhsa_user_sgpr_count 2
  .amdhsa_user_sgpr_kernarg_segment_ptr 1
  .amdhsa_system_sgpr_workgroup_id_x 1
.end_amdhsa_kernel""")
    return "\n".join(g.L) + "\n"


if __name__ == "__main__":
    out = sys.argv[1] if len(sys.argv) > 1 else "standalone__dcn_v2_cross__recsys.s"
    open(out, "w").write(gen())
```

```python
import sys
from collections import defaultdict

OPT = dict(
    D=4,
    BPOS=16,
    INTER_LAST=1,
    CAP=5,
    NOPOLL=0,
    NOX=0,
    NOW=0,
    LATW=64,
    MAP=0,
    WARM=0,
    EPI_PRI=1,
    XLEAD=30,
    LAT=22,
    R=2,
    POLL_CHK=12,
    FLAG_DELAY=16,
    STAMP=0,
    TOUCH=4,
    TW1=64,
    TW2=300,
    FLAG_VIS=6,
    FAST=1,
    ST0=192,
    STEP=2,
)
for a in sys.argv[2:]:
    k, v = a.split("=")
    OPT[k] = int(v)

D = OPT["D"]
NWF = D + 2

ACC = 64
X0F = 128
OWN = 192
WF = 224
TMPN = 248
TMPN2 = 34
V_LANE16 = 1
V_LANE16B = 2
V_TR = 3
V_WD = 9
V_FLAGST = 13
V_POLLOFF = 14
V_POLL = 15
V_BA = 16
V_BB = 56
V_DUM = 60
V_BOFF = 24
V_OOFF = 25
V_ET = 26
V_XR = 34
V_XD = 42
V_T0 = 46
V_ATOM = 54
V_RDY = 49
V_T64 = 48
V_ONE = 55
V_OWR = 52
V_TCH = 51

S_X0, S_W, S_B, S_OUT, S_WS, S_DBG = 4, 8, 12, 16, 20, 24
S_RB, S_C, S_WV = 28, 29, 30
S_WROW = 32
S_XOFF = 34
S_LDSW = 42
S_T = 44
S_ROW0B = 52
S_WROW0 = 54
S_BOFF = 56
S_OUTOFF = 57
S_MASK = 58
S_VCC = 60
S_TS = 62
S_OWNB = 77
S_TW = 78
S_FAST = 76
S_XCC = 75
S_W0Q = 82
S_XPG = 86

XB = {1: 16 << 20, 2: 24 << 20}
UNIT = 32768
NUNIT = 5


def unit_of(beta):
    return {0: 0, 1: 1, 2: 2, 3: 0, 4: 1}.get(beta, (beta + 2) % 5)


def xf_reg(q, j, s):
    if j == 0:
        b = OWN + (q * 2 + s) * 4
        return f"v[{b}:{b+3}]"
    b = ((q * 7 + (j - 1)) * 2 + s) * 4
    return f"a[{b}:{b+3}]"


class G:
    def __init__(s):
        s.L = []
        s.ldsq = []
        s.vmq = []
        s.cnt = 0

    def e(s, txt):
        s.L.append("    " + txt)
        s.cnt += 1

    def label(s, name):
        s.L.append(name + ":")

    def c(s, txt):
        s.L.append("    ; " + txt)

    def lds(s, txt, tag=None):
        s.e(txt)
        s.ldsq.append(tag)

    def vm(s, txt, tag=None):
        s.e(txt)
        s.vmq.append(tag)

    def wait(s, vm=None, lds=None):
        parts = []
        if vm is not None and vm in s.vmq:
            idx = len(s.vmq) - 1 - s.vmq[::-1].index(vm)
            n = len(s.vmq) - 1 - idx
            s.vmq = s.vmq[idx + 1:]
            parts.append(f"vmcnt({min(n, 63)})")
        if lds is not None and lds in s.ldsq:
            idx = len(s.ldsq) - 1 - s.ldsq[::-1].index(lds)
            n = len(s.ldsq) - 1 - idx
            s.ldsq = s.ldsq[idx + 1:]
            parts.append(f"lgkmcnt({min(n, 15)})")
        if parts:
            s.e("s_waitcnt " + " ".join(parts))

    def wait_all(s):
        s.e("s_waitcnt vmcnt(0) lgkmcnt(0)")
        s.vmq = []
        s.ldsq = []


ORD = [
    [(0, 0), (1, 0), (0, 1), (0, 2), (0, 3), (1, 1), (1, 2), (1, 3)],
    [(0, 0), (0, 1), (1, 0), (0, 2), (0, 3), (1, 1), (1, 2), (1, 3)],
    [(0, 0), (1, 0), (0, 1), (1, 1), (0, 2), (1, 2), (0, 3), (1, 3)],
]
NBLK = 24
NT = NBLK * 32


def gen():
    g = G()
    e = g.e
    hdr = """; DCN-v2 cross network, fused 3-layer kernel (generated by gen.py)
; @launch grid=(256,1,1) block=(256,1,1) lds=163840
.amdgcn_target "amdgcn-amd-amdhsa--gfx950"
.text
.globl standalone__dcn_v2_cross__recsys_kernel
.p2align 8
.type standalone__dcn_v2_cross__recsys_kernel,@function
standalone__dcn_v2_cross__recsys_kernel:"""
    g.L.append(hdr)
    slow = []

    e("s_cmp_ge_u32 s2, 256")
    e("s_cbranch_scc1 L_end")
    e("s_load_dwordx4 s[44:47], s[0:1], 0")
    e("s_load_dwordx4 s[48:51], s[0:1], 16")
    e("s_load_dwordx4 s[64:67], s[0:1], 32")
    e("v_lshrrev_b32 v46, 6, v0")
    e("v_and_b32 v0, 63, v0")
    e("s_and_b32 s68, s2, 7")
    e("s_lshr_b32 s69, s2, 3")
    e(f"v_readfirstlane_b32 s{S_WV}, v46")
    if OPT["MAP"] == 0:
        e(f"s_and_b32 s{S_C}, s69, 7")
        e("s_lshr_b32 s69, s69, 3")
    else:
        e(f"s_lshr_b32 s{S_C}, s69, 2")
        e("s_and_b32 s69, s69, 3")
    e("s_lshl_b32 s68, s68, 2")
    e(f"s_add_u32 s{S_RB}, s68, s69")
    e("s_waitcnt lgkmcnt(0)")
    for (S, lo, size) in ((S_X0, 44, 8 << 20), (S_W, 46, 6 << 20), (S_B, 48, 6144), (S_OUT, 50, 8 << 20),
                          (S_DBG, 64, 256), (S_WS, 66, 256 << 20)):
        e(f"s_mov_b32 s{S}, s{lo}")
        e(f"s_and_b32 s{S+1}, s{lo+1}, 0xffff")
        e(f"s_mov_b32 s{S+2}, {size}")
        e(f"s_mov_b32 s{S+3}, 0x00020000")
    e(f"s_mov_b32 s{S_MASK}, 0xffff0000")
    e("s_mov_b32 s74, 200000")
    e(f"s_lshl_b32 s{S_LDSW}, s{S_WV}, 13")
    e(f"s_lshl_b32 s68, s{S_RB}, 7")
    e(f"s_lshl_b32 s69, s{S_WV}, 5")
    e("s_add_u32 s68, s68, s69")
    e(f"s_lshl_b32 s{S_ROW0B}, s68, 11")
    e(f"s_lshl_b32 s{S_BOFF}, s{S_C}, 8")
    e(f"s_add_u32 s{S_OUTOFF}, s{S_ROW0B}, s{S_BOFF}")
    e(f"s_lshl_b32 s68, s{S_RB}, 2")
    e(f"s_add_u32 s68, s68, s{S_WV}")
    e("s_lshl_b32 s69, s68, 16")
    for j in range(8):
        e(f"s_add_u32 s70, s{S_C}, {j}")
        e("s_and_b32 s70, s70, 7")
        e("s_lshl_b32 s70, s70, 13")
        e(f"s_add_u32 s{S_XOFF+j}, s69, s70")
    for i in range(2):
        e(f"s_lshl_b32 s70, s{S_WV}, 1")
        e(f"s_add_u32 s70, s70, {i}")
        e(f"s_add_u32 s70, s70, s{S_C}")
        e("s_and_b32 s70, s70, 7")
        e("s_lshl_b32 s70, s70, 18")
        e(f"s_add_u32 s{S_WROW+i}, s70, s{S_BOFF}")
    e(f"s_lshr_b32 s71, s{S_WV}, 1")
    e(f"s_add_u32 s71, s71, s{S_C}")
    e(f"s_lshl_b32 s73, s{S_WV}, 1")
    e("s_and_b32 s73, s73, 3")
    e("s_lshl_b32 s73, s73, 16")
    e(f"s_add_u32 s73, s73, s{S_BOFF}")
    for q in range(4):
        e(f"s_add_u32 s70, s71, {2*q}")
        e("s_and_b32 s70, s70, 7")
        e("s_lshl_b32 s70, s70, 18")
        e(f"s_add_u32 s{S_W0Q+q}, s70, s73")
    for n in range(8):
        e(f"s_add_u32 s70, s{S_C}, {n}")
        e("s_and_b32 s70, s70, 7")
        e("s_lshl_b32 s70, s70, 8")
        e(f"s_add_u32 s{S_XPG+n}, s70, s{S_ROW0B}")
    e("s_lshl_b32 s72, s68, 7")
    e(f"s_lshl_b32 s73, s{S_C}, 2")
    e("s_add_u32 s73, s73, s72")
    e(f"v_lshlrev_b32 v{V_LANE16}, 4, v0")
    e(f"v_add_u32 v{V_LANE16B}, 4096, v{V_LANE16}")
    T = V_T0
    e(f"v_lshrrev_b32 v{T}, 5, v0")
    e(f"v_and_b32 v{T+1}, 31, v0")
    e(f"v_lshrrev_b32 v{T+2}, 2, v0")
    e(f"v_and_b32 v{T+2}, 3, v{T+2}")
    e(f"v_and_b32 v{T+3}, 3, v0")
    e(f"v_lshrrev_b32 v{T+4}, 4, v0")
    e(f"v_and_b32 v{T+4}, 1, v{T+4}")
    e(f"v_lshlrev_b32 v{V_FLAGST}, 5, v0")
    e(f"v_add_u32 v{V_FLAGST}, s73, v{V_FLAGST}")
    e(f"v_mov_b32 v{T+5}, 0x7ffffff0")
    e("v_cmp_gt_u32 vcc, 4, v0")
    e("s_nop 1")
    e(f"v_cndmask_b32 v{T+6}, v{T+5}, v{V_FLAGST}, vcc")
    e("v_cmp_gt_u32 vcc, 1, v0")
    e("s_nop 1")
    e(f"v_cndmask_b32 v{V_FLAGST}, v{T+5}, v{V_FLAGST}, vcc")
    e(f"v_mov_b32 v{T+7}, 0")
    g.vm(f"buffer_store_dword v{T+7}, v{T+6}, s[{S_WS}:{S_WS+3}], 0 offen sc1", "fz")
    e(f"v_and_b32 v{V_POLLOFF}, 7, v0")
    e(f"v_lshlrev_b32 v{V_POLLOFF}, 2, v{V_POLLOFF}")
    e(f"v_add_u32 v{V_POLLOFF}, s72, v{V_POLLOFF}")
    e(f"s_lshl_b32 s70, s{S_RB}, 2")
    e(f"v_mov_b32 v{V_ATOM}, s70")
    e(f"s_lshl_b32 s71, s{S_WV}, 6")
    e(f"v_or_b32 v{T+7}, s71, v0")
    e(f"v_cmp_eq_u32 vcc, 0, v{T+7}")
    e("s_nop 1")
    e(f"v_cndmask_b32 v{V_ATOM}, v{T+5}, v{V_ATOM}, vcc")
    e(f"s_getreg_b32 s{S_XCC}, hwreg(HW_REG_XCC_ID)")
    e(f"s_and_b32 s{S_XCC}, s{S_XCC}, 7")
    e(f"s_lshl_b32 s{S_XCC}, s{S_XCC}, 2")
    e(f"s_lshl_b32 s70, 1, s{S_XCC}")
    e(f"v_mov_b32 v{V_ONE}, s70")
    e(f"s_lshl_b32 s{S_XCC}, 8, s{S_XCC}")
    e(f"v_lshrrev_b32 v{T+5}, 3, v0")
    e(f"v_and_b32 v{T+6}, 7, v0")
    e(f"v_lshrrev_b32 v{T+7}, 4, v0")
    e(f"v_and_b32 v{T+7}, 1, v{T+7}")
    e(f"v_lshlrev_b32 v{T+7}, 2, v{T+7}")
    e(f"v_xor_b32 v{T+6}, v{T+6}, v{T+7}")
    e(f"v_lshlrev_b32 v{T+6}, 4, v{T+6}")
    e(f"v_lshlrev_b32 v{T+5}, 11, v{T+5}")
    e(f"v_add_u32 v{V_WD}, v{T+5}, v{T+6}")
    for i in range(1, 4):
        e(f"v_add_u32 v{V_WD+i}, {i*15360}, v{V_WD}")
    e(f"v_lshrrev_b32 v{T+5}, 1, v{T+2}")
    e(f"v_lshlrev_b32 v{T+5}, 6, v{T+5}")
    e(f"v_lshlrev_b32 v{T+6}, 5, v{T+4}")
    e(f"v_add_u32 v{T+5}, v{T+5}, v{T+6}")
    e(f"v_lshlrev_b32 v{T+6}, 3, v{T+3}")
    e(f"v_add_u32 v{T+5}, v{T+5}, v{T+6}")
    e(f"v_lshlrev_b32 v{T+6}, 7, v{T+2}")
    e(f"v_add_u32 v{T+5}, v{T+5}, v{T+6}")
    e(f"v_lshlrev_b32 v{T+6}, 10, v{T}")
    e(f"v_add_u32 v{V_TR}, v{T+5}, v{T+6}")
    e(f"v_xor_b32 v{V_TR+1}, 64, v{V_TR}")
    for b in (1, 2):
        e(f"v_add_u32 v{V_TR+2*b}, {b*65536}, v{V_TR}")
        e(f"v_add_u32 v{V_TR+2*b+1}, {b*65536}, v{V_TR+1}")
    e(f"v_lshlrev_b32 v{V_BOFF}, 1, v{T+1}")
    e(f"v_mov_b32 v{T+5}, 0x7ffffff0")
    e("v_cmp_gt_u32 vcc, 32, v0")
    e("s_nop 1")
    e(f"v_cndmask_b32 v{V_BOFF}, v{T+5}, v{V_BOFF}, vcc")
    e(f"v_mov_b32 v{T+5}, 0x3f80")
    e(f"v_cndmask_b32 v{V_BB}, 0, v{T+5}, vcc")
    for r in (V_BB+1, V_BB+2, V_BB+3, V_BA+1, V_BA+2, V_BA+3, V_BA+5, V_BA+6, V_BA+7):
        e(f"v_mov_b32 v{r}, 0")
    e(f"v_lshlrev_b32 v{V_OOFF}, 11, v{T+1}")
    e(f"v_lshlrev_b32 v{T+6}, 4, v{T}")
    e(f"v_add_u32 v{V_OOFF}, v{V_OOFF}, v{T+6}")
    e(f"v_lshrrev_b32 v{T+5}, 4, v0")
    e(f"v_and_b32 v{T+6}, 15, v0")
    e(f"v_xor_b32 v{T+6}, v{T+6}, v{T+5}")
    e(f"v_lshlrev_b32 v{T+5}, 11, v{T+5}")
    for i in range(4):
        e(f"v_xor_b32 v{T+7}, {4*i}, v{T+6}")
        e(f"v_lshlrev_b32 v{T+7}, 4, v{T+7}")
        e(f"v_add_u32 v{T+7}, v{T+7}, v{T+5}")
        e(f"v_add_u32 v{V_XD+i}, {i*(8192-1024)}, v{T+7}")
    e(f"v_and_b32 v{T+5}, 15, v{T+1}")
    e(f"v_xor_b32 v{T+6}, v{T+5}, v{T}")
    e(f"v_lshlrev_b32 v{T+6}, 4, v{T+6}")
    e(f"v_lshlrev_b32 v{T+7}, 8, v{T+1}")
    e(f"v_add_u32 v{T+7}, s{S_LDSW}, v{T+7}")
    e(f"v_add_u32 v{T+7}, {3*UNIT}, v{T+7}")
    e(f"v_add_u32 v{T+6}, v{T+6}, v{T+7}")
    for jj in range(8):
        e(f"v_xor_b32 v{V_XR+jj}, {32*jj}, v{T+6}")
    e(f"v_lshlrev_b32 v{T+5}, 4, v{T+5}")
    e(f"v_add_u32 v{V_OWR}, v{T+5}, v{T+7}")
    e(f"v_lshlrev_b32 v{T+5}, 3, v{T}")
    e(f"v_add_u32 v{V_OWR}, v{V_OWR}, v{T+5}")
    e(f"v_lshrrev_b32 v{V_TCH}, 4, v0")
    e(f"v_lshlrev_b32 v{V_TCH}, 11, v{V_TCH}")
    e(f"v_and_b32 v{T+5}, 15, v0")
    e(f"v_lshlrev_b32 v{T+5}, 7, v{T+5}")
    e(f"v_add_u32 v{V_TCH}, v{V_TCH}, v{T+5}")
    e(f"s_lshr_b32 s70, s2, 3")
    e(f"s_lshl_b32 s70, s70, 2")
    e(f"s_add_u32 s70, s70, s{S_WV}")
    e(f"s_lshl_b32 s70, s70, 14")
    e(f"s_mov_b32 s{S_TW}, s70")
    e(f"s_add_u32 s{S_TW+1}, s{S_TW}, {2<<20}")
    e(f"s_add_u32 s{S_TW+2}, s{S_TW}, {4<<20}")

    V_ST = 53
    stamp_n = [0]
    def stamp(kind=0):
        if not OPT["STAMP"]:
            return
        if (OPT["STAMP"] == 3) != (kind == 3):
            return
        if kind == 3:
            e(f"s_memrealtime s[{S_TS}:{S_TS+1}]")
        else:
            e(f"s_memtime s[{S_TS}:{S_TS+1}]")
        e("s_waitcnt lgkmcnt(0)")
        g.ldsq = []
        e(f"v_writelane_b32 v{V_ST}, s{S_TS}, {stamp_n[0]}")
        stamp_n[0] += 1
    if OPT["STAMP"]:
        e(f"v_mov_b32 v{V_ST}, 0")
    stamp()
    stamp(3)
    e(f"v_lshlrev_b32 v{V_T64}, 6, v0")

    m0_cur = [None]
    soff_cur = {}
    def set_m0(val):
        if m0_cur[0] != val:
            e(f"s_add_u32 m0, s{S_LDSW}, {val}")
            m0_cur[0] = val
            return True
        return False
    def set_soff(sreg, base, const):
        if soff_cur.get(sreg) != (base, const):
            e(f"s_add_u32 s{sreg}, s{base}, {const}")
            soff_cur[sreg] = (base, const)
            return True
        return False

    def w_dma(beta):
        l, b = divmod(beta, 8)
        P, q = ORD[l][b]
        unit = unit_of(beta)
        out = []
        for part in range(2):
            if l == 0:
                const = P * 128 + part * 65536
                base = S_W0Q + q
            else:
                const = l * (2 << 20) + q * 32 * 2048 + P * 128
                base = S_WROW + part
            for i in range(4):
                off = f" offset:{i*1024}" if i else ""
                def pre(part=part, base=base, const=const):
                    a = set_m0(unit*UNIT + part*4096)
                    b_ = set_soff(S_T, base, const)
                    return a and not b_
                def post(i=i, off=off):
                    g.vm(f"buffer_load_dwordx4 v{V_WD+i}, s[{S_W}:{S_W+3}], s{S_T} offen{off} lds", ("w", beta))
                out.append((pre, post))
        return out

    def x0_dma(unit, n, tag, first_wait=None):
        out = []
        for half in range(2):
            for i in range(4):
                off = f" offset:{i*1024}" if i else ""
                def pre(i=i, half=half):
                    if first_wait is not None and i == 0 and half == 0:
                        g.wait(lds=first_wait)
                    a = set_m0(unit*UNIT + half*4096)
                    b_ = set_soff(S_T+7, S_XPG+n, half*16*2048)
                    return a and not b_
                def post(i=i, off=off):
                    g.vm(f"buffer_load_dwordx4 v{V_XD+i}, s[{S_X0}:{S_X0+3}], s{S_T+7} offen{off} lds", tag)
                out.append((pre, post))
        return out

    def runv(ops):
        for pre, post in ops:
            if pre():
                e("s_nop 0")
            post()

    def x0_read_ops(unit, q, half, tag):
        ops = [lambda: g.wait(vm=tag)]
        for jj in range(8):
            j = 4 * half + jj // 2
            s_ = jj % 2
            base = unit * UNIT - 3 * UNIT
            if base >= 0:
                ops.append(lambda j=j, s_=s_, jj=jj, base=base: g.lds(
                    f"ds_read_b128 {xf_reg(q, j, s_)}, v{V_XR+jj} offset:{base}", ("x0r", tag)))
            else:
                def f(j=j, s_=s_, jj=jj, base=base):
                    e(f"v_add_u32 v{V_T0}, {base}, v{V_XR+jj}")
                    g.lds(f"ds_read_b128 {xf_reg(q, j, s_)}, v{V_T0}", ("x0r", tag))
                ops.append(f)
        return ops

    def run(ops):
        for op in ops:
            op()

    def bias_load(l, i):
        g.vm(f"buffer_load_ushort v{V_BA+4*(i%2)}, v{V_BOFF}, s[{S_B}:{S_B+3}], s{S_T+1+l} offen offset:{64*i}", ("b", l, i))

    def bias_mfma(l, i):
        g.wait(vm=("b", l, i))
        a = ACC + 16 * i
        ba = V_BA + 4 * (i % 2)
        e(f"v_mfma_f32_32x32x16_bf16 v[{a}:{a+15}], v[{ba}:{ba+3}], v[{V_BB}:{V_BB+3}], 0")

    def touch_w(l):
        for k in range(4):
            e(f"s_add_u32 s70, s{S_TW+l}, {4096*k}")
            g.vm(f"buffer_load_dword v{V_DUM+k}, v{V_T64}, s[{S_W}:{S_W+3}], s70 offen", "touch")

    for l in range(3):
        e(f"s_add_u32 s{S_T+1+l}, s{S_BOFF}, {l*2048}")
    bias_load(0, 0)
    bias_load(0, 1)
    runv(w_dma(0))
    PG = {(0, 0): 3, (0, 1): 4, (1, 0): 2, (1, 1): 3, (2, 0): 4, (2, 1): 3, (3, 0): 4, (3, 1): 3}
    def ptag(q, h):
        return ("x0", q, h)
    runv(x0_dma(3, 0, ptag(0, 0)))
    if OPT["TOUCH"] & 4:
        e(f"v_lshrrev_b32 v{V_T0}, 4, v0")
        e(f"v_lshlrev_b32 v{V_T0}, 21, v{V_T0}")
        e(f"v_and_b32 v{V_T0+1}, 15, v0")
        e(f"v_lshlrev_b32 v{V_T0+1}, 7, v{V_T0+1}")
        e(f"v_add_u32 v{V_T0}, v{V_T0}, v{V_T0+1}")
        e(f"s_lshl_b32 s70, s2, 2")
        e(f"s_add_u32 s70, s70, s{S_WV}")
        e(f"s_lshl_b32 s70, s70, 11")
        g.vm(f"buffer_load_dword v{V_DUM}, v{V_T0}, s[{S_W}:{S_W+3}], s70 offen", "touch")
    if OPT["TOUCH"] & 8:
        e(f"s_lshl_b32 s70, s{S_C}, 2")
        e(f"s_add_u32 s70, s70, s{S_WV}")
        e(f"s_lshl_b32 s70, s70, 13")
        e(f"s_lshl_b32 s71, s{S_RB}, 18")
        e(f"s_add_u32 s70, s70, s71")
        g.vm(f"buffer_load_dword v{V_DUM+2}, v{V_TCH}, s[{S_X0}:{S_X0+3}], s70 offen", "touch")
    if OPT["TOUCH"] & 1:
        e(f"s_lshl_b32 s70, s{S_C}, 2")
        e(f"s_add_u32 s70, s70, s{S_WV}")
        e(f"s_lshl_b32 s70, s70, 13")
        e(f"s_lshl_b32 s71, s{S_RB}, 18")
        e(f"s_add_u32 s70, s70, s71")
        g.vm(f"buffer_load_dword v{V_DUM+2}, v{V_TCH}, s[{S_X0}:{S_X0+3}], s70 offen", "touch")
        touch_w(0)
    runv(x0_dma(4, 1, ptag(0, 1)))
    runv(x0_dma(2, 2, ptag(1, 0)))
    runv(w_dma(1))
    if OPT["WARM"]:
        e(f"s_add_u32 s70, s{S_XOFF}, {XB[1]}")
        g.vm(f"buffer_load_dword v{V_DUM+3}, v{V_LANE16}, s[{S_WS}:{S_WS+3}], s70 offen", "touch")
        e(f"s_add_u32 s70, s{S_XOFF}, {XB[2]}")
        g.vm(f"buffer_load_dword v{V_DUM+3}, v{V_LANE16}, s[{S_WS}:{S_WS+3}], s70 offen", "touch")
        g.vm(f"buffer_load_dword v{V_DUM+3}, v{V_LANE16}, s[{S_OUT}:{S_OUT+3}], s{S_OUTOFF} offen", "touch")
    stamp()
    run(x0_read_ops(3, 0, 0, ptag(0, 0)))
    for pc in range(16):
        i, gg = divmod(pc, 4)
        r = X0F + i * 16 + gg * 4
        e(f"v_xor_b32 v{V_T0}, {16*pc}, v{V_OWR}")
        g.lds(f"ds_read_b64 v[{r+2}:{r+3}], v{V_T0}", ("own", pc))
    for pc in range(16):
        i, gg = divmod(pc, 4)
        r = X0F + i * 16 + gg * 4
        g.wait(lds=("own", pc))
        if pc == 15:
            runv(x0_dma(3, 3, ptag(1, 1)))
        e(f"v_lshlrev_b32 v{r}, 16, v{r+2}")
        e(f"v_and_b32 v{r+1}, s{S_MASK}, v{r+2}")
        e(f"v_lshlrev_b32 v{r+2}, 16, v{r+3}")
        e(f"v_and_b32 v{r+3}, s{S_MASK}, v{r+3}")
    stamp()
    e("s_barrier")
    g.vm(f"buffer_atomic_add v{V_ONE}, v{V_ATOM}, s[{S_DBG}:{S_DBG+3}], 0 offen sc1", "atom")

    fill = defaultdict(list)
    fill2 = defaultdict(list)
    used = defaultdict(int)
    CAP = OPT["CAP"]
    for t in range(NT + 200):
        used[t] = 2 + (1 if t % 2 == 0 else 0) if t < NT else 0
        if t % OPT["R"] == 1 % OPT["R"] and t < NT - 64:
            used[t] += 2

    def at(t, op, cost=1):
        fill[t].append(op)
        used[t] += cost

    def chain(t0, ops, cap=None):
        t = t0
        c = cap if cap is not None else CAP
        for op in ops:
            while used[t] >= c:
                t += 1
            at(t, op)
        return t + 1

    vmq = defaultdict(list)
    def vsched(cls, earliest, deadline, ops):
        for n, (pre, post) in enumerate(ops):
            dl = deadline[n] if isinstance(deadline, (list, tuple)) else deadline
            vmq[cls].append((earliest, dl, pre, post))

    mf = [None] * NT
    first_use = {}
    last_use = {}
    done = {}
    start = {}
    seen = set()
    use_t = {}
    for beta in range(NBLK):
        l, b = divmod(beta, 8)
        P, q = ORD[l][b]
        firstq = (l, q) not in seen
        seen.add((l, q))
        lastP = all(ORD[l][bb][0] != P for bb in range(b + 1, 8))
        inter = firstq and (not lastP or OPT["INTER_LAST"])
        if inter:
            seq = [(ns, j, s_) for j in range(8) for ns in range(2) for s_ in range(2)]
        else:
            seq = [(ns, j, s_) for ns in range(2) for j in range(8) for s_ in range(2)]
        for n, (ns, j, s_) in enumerate(seq):
            i = 2 * P + ns
            t = beta * 32 + n
            mf[t] = (l, beta, P, q, ns, i, j, s_)
            first_use.setdefault((l, q), t)
            use_t.setdefault((l, q, j, s_), t)
            last_use[(l, q)] = t
            done[(l, i)] = t
            start.setdefault((l, i), t)
    LAT = OPT["LAT"]
    for l in range(3):
        for i in range(4):
            ts = start[(l, i)]
            fill[ts].insert(0, lambda l=l, i=i: bias_mfma(l, i))
            used[ts] += 3
            if not (l == 0 and i < 2):
                pl, pi = (l, i - 2) if i >= 2 else (l - 1, i + 2)
                tl = max(start[(pl, pi)] + 2, ts - 48)
                at(tl, lambda l=l, i=i: bias_load(l, i))
    BPOS = OPT["BPOS"]
    for beta in range(NBLK):
        t = beta * 32 + BPOS
        if beta + 1 < NBLK:
            at(t, lambda beta=beta: g.wait(vm=("w", beta + 1)))
            at(t, lambda: e("s_barrier"))
        if beta <= 3:
            nxt = [beta + 2]
        elif beta == 4:
            nxt = [6, 7, 8]
        else:
            nxt = [beta + 4]
        for nb in nxt:
            if nb < NBLK and not OPT["NOW"]:
                vsched("w", t + 1, 32 * (nb - 1) + BPOS - OPT["LATW"], w_dma(nb))
    def stage(t, q, h, nxt, tnext=None):
        tag = ptag(q, h)
        u = PG[(q, h)]
        t = chain(t, x0_read_ops(u, q, h, tag))
        if nxt is not None:
            n = 2 * nxt[0] + nxt[1]
            vsched("x0", t, tnext - LAT, x0_dma(u, n, ptag(*nxt), first_wait=("x0r", tag)))
    ST = {(0, 1): 2, (1, 0): 8, (1, 1): 34, (2, 0): 56, (2, 1): 90, (3, 0): 112, (3, 1): 132}
    stage(ST[(0, 1)], 0, 1, (2, 0), ST[(2, 0)])
    stage(ST[(1, 0)], 1, 0, None)
    stage(ST[(1, 1)], 1, 1, (2, 1), ST[(2, 1)])
    stage(ST[(2, 0)], 2, 0, (3, 0), ST[(3, 0)])
    stage(ST[(2, 1)], 2, 1, (3, 1), ST[(3, 1)])
    stage(ST[(3, 0)], 3, 0, None)
    stage(ST[(3, 1)], 3, 1, None)
    if OPT["TOUCH"] & 2:
        at(OPT["TW1"], lambda: touch_w(1), 8)
        at(OPT["TW2"], lambda: touch_w(2), 8)
    def switch_tr():
        e(f"v_lshrrev_b32 v{V_T0}, 5, v0")
        e(f"v_lshlrev_b32 v{V_T0}, 9, v{V_T0}")
        for k in range(6):
            e(f"v_sub_u32 v{V_TR+k}, v{V_TR+k}, v{V_T0}")
    switch_at = 256 - D

    def epi_ops(l, i, dst):
        ops = []
        for d in range(8):
            a0 = ACC + i * 16 + 2 * d
            x0 = X0F + i * 16 + 2 * d
            src = OWN + i * 8 + d
            t0 = V_ET + (d % 4) * 2
            if l == 0:
                ops.append(lambda a0=a0, x0=x0, t0=t0: e(f"v_fma_f32 v{t0}, v{x0}, v{a0}, v{x0}"))
                ops.append(lambda a0=a0, x0=x0, t0=t0: e(f"v_fma_f32 v{t0+1}, v{x0+1}, v{a0+1}, v{x0+1}"))
            else:
                ops.append(lambda src=src, t0=t0: e(f"v_lshlrev_b32 v{t0}, 16, v{src}"))
                ops.append(lambda src=src, t0=t0: e(f"v_and_b32 v{t0+1}, s{S_MASK}, v{src}"))
                ops.append(lambda a0=a0, x0=x0, t0=t0: e(f"v_fma_f32 v{t0}, v{x0}, v{a0}, v{t0}"))
                ops.append(lambda a0=a0, x0=x0, t0=t0: e(f"v_fma_f32 v{t0+1}, v{x0+1}, v{a0+1}, v{t0+1}"))
            ops.append(lambda t0=t0, d=d: e(f"v_cvt_pk_bf16_f32 v{dst+d}, v{t0}, v{t0+1}"))
        return ops

    def ready_issue():
        e(f"s_lshl_b32 s{S_T+5}, s{S_RB}, 2")
        e(f"v_mov_b32 v{V_RDY+1}, s{S_T+5}")
        g.vm(f"buffer_load_dword v{V_RDY}, v{V_RDY+1}, s[{S_DBG}:{S_DBG+3}], 0 offen sc1", "rdy")

    def ready_check():
        g.wait(vm="rdy")
        g.label("L_rdy")
        e(f"v_readfirstlane_b32 s70, v{V_RDY}")
        e("s_nop 3")
        e("s_lshr_b32 s71, s70, 4")
        e("s_and_b32 s71, s71, 0x0f0f0f0f")
        e("s_and_b32 s72, s70, 0x0f0f0f0f")
        e("s_add_u32 s71, s71, s72")
        e("s_mul_i32 s71, s71, 0x01010101")
        e("s_lshr_b32 s71, s71, 24")
        e("s_cmp_lg_u32 s71, 8")
        e("s_cbranch_scc1 L_rdy_slow")
        g.label("L_rdy_out")
        e(f"s_cmp_eq_u32 s70, s{S_XCC}")
        e(f"s_cselect_b32 s{S_FAST}, {OPT['FAST']}, 0")
        slow.append(f"""L_rdy_slow:
    s_sub_u32 s74, s74, 1
    s_cbranch_scc1 L_rdy_out
    buffer_load_dword v{V_RDY}, v{V_RDY+1}, s[{S_DBG}:{S_DBG+3}], 0 offen sc1
    s_waitcnt vmcnt(0)
    s_branch L_rdy""")

    flag_t = {}
    prev_epi_end = 0
    for l in range(3):
        for i in sorted(range(4), key=lambda i: done[(l, i)]):
            tc = max(done[(l, i)] + 4, prev_epi_end)
            own_last = max(t for t in range(l * 256, l * 256 + 256) if mf[t][3] == i and mf[t][6] == 0)
            direct = own_last < tc
            TM = TMPN if i % 2 == 0 else TMPN2
            dst = OWN + i * 8 if direct else TM
            tend = chain(tc, epi_ops(l, i, dst), cap=CAP + OPT["EPI_PRI"])
            prev_epi_end = tend
            if l < 2:
                assert tend <= start[(l + 1, i)], (l, i, tend, start[(l + 1, i)])
                assert tend <= use_t[(l + 1, i, 0, 0)], (l, i, tend)
            if l < 2:
                voff = V_LANE16 if i < 2 else V_LANE16B
                def st(dst=dst, voff=voff, l=l, i=i):
                    uid = f"{l}_{i}"
                    stamp(3)
                    set_soff(S_T+4, S_XOFF, XB[l+1])
                    e(f"s_cmp_lg_u32 s{S_FAST}, 0")
                    e(f"s_cbranch_scc1 L_sf{uid}")
                    for s_ in range(2):
                        r = dst + 4 * s_
                        off = (i % 2) * 2048 + s_ * 1024
                        e(f"buffer_store_dwordx4 v[{r}:{r+3}], v{voff}, s[{S_WS}:{S_WS+3}], s{S_T+4} offen offset:{off} sc1")
                    e(f"s_branch L_sj{uid}")
                    g.label(f"L_sf{uid}")
                    for s_ in range(2):
                        r = dst + 4 * s_
                        off = (i % 2) * 2048 + s_ * 1024
                        g.vm(f"buffer_store_dwordx4 v[{r}:{r+3}], v{voff}, s[{S_WS}:{S_WS+3}], s{S_T+4} offen offset:{off}", ("st", l, i))
                    g.label(f"L_sj{uid}")
                at(tend, st, 5)
                tf = tend + OPT["FLAG_DELAY"]
                flag_t[(l, i)] = tf
                def fl(l=l, i=i):
                    uid = f"{l}_{i}"
                    if OPT["NOPOLL"]:
                        return
                    stamp(3)
                    g.wait(vm=("st", l, i))
                    stamp(3)
                    e(f"v_mov_b32 v{V_T0+1}, {l+1}")
                    e(f"s_cmp_lg_u32 s{S_FAST}, 0")
                    e(f"s_cbranch_scc1 L_ff{uid}")
                    e(f"buffer_store_dword v{V_T0+1}, v{V_FLAGST}, s[{S_WS}:{S_WS+3}], 0 offen offset:{32*i} sc1")
                    e(f"s_branch L_fj{uid}")
                    g.label(f"L_ff{uid}")
                    g.vm(f"buffer_store_dword v{V_T0+1}, v{V_FLAGST}, s[{S_WS}:{S_WS+3}], 0 offen offset:{32*i}", "fl")
                    g.label(f"L_fj{uid}")
                at(tf, fl, 5)
                if l == 0 and tc == min(done[(0, k)] for k in range(4)) + 4:
                    at(tc - 50, ready_issue, 3)
                    at(tc - 4, ready_check, 12)
                if not direct:
                    tm = max(own_last + 1, tend + 1)
                    chain(tm, [lambda d=d, i=i, TM=TM: e(f"v_mov_b32 v{OWN+i*8+d}, v{TM+d}") for d in range(8)])
            else:
                for s_ in range(2):
                    r = dst + 4 * s_
                    at(tend + 1, lambda r=r: (e("s_nop 1"), e(f"v_permlane32_swap_b32 v{r}, v{r+2}"), e(f"v_permlane32_swap_b32 v{r+1}, v{r+3}")), 3)
                    at(tend + 2, lambda r=r, s_=s_, i=i: g.vm(
                        f"buffer_store_dwordx4 v[{r}:{r+3}], v{V_OOFF}, s[{S_OUT}:{S_OUT+3}], s{S_OUTOFF} offen offset:{64*i+32*s_}", "out"))
    pid = 0
    for l in (1, 2):
        for q in range(4):
            tfu = first_use[(l, q)]
            tfree = last_use[(l - 1, q)] + 1
            tchk = max(tfu - OPT["XLEAD"], tfree, flag_t[(l - 1, q)] + OPT["FLAG_VIS"] + OPT["POLL_CHK"])
            tp = tchk - OPT["POLL_CHK"]
            pid += 1

            def poll_issue(q=q, pid=pid):
                g.vm(f"buffer_load_dword v{V_POLL}, v{V_POLLOFF}, s[{S_WS}:{S_WS+3}], 0 offen offset:{32*q} sc1", ("poll", pid))

            def poll_check(l=l, q=q, pid=pid):
                if OPT["NOPOLL"]:
                    return
                stamp(3)
                g.wait(vm=("poll", pid))
                stamp(3)
                e(f"v_cmp_gt_u32 s[{S_VCC}:{S_VCC+1}], {l}, v{V_POLL}")
                e("s_nop 3")
                e(f"s_cmp_lg_u64 s[{S_VCC}:{S_VCC+1}], 0")
                e(f"s_cbranch_scc1 L_slow{pid}")
                g.label(f"L_back{pid}")
                stamp(3)
                slow.append(f"""L_slow{pid}:
    buffer_load_dword v{V_POLL}, v{V_POLLOFF}, s[{S_WS}:{S_WS+3}], 0 offen offset:{32*q} sc1
    s_waitcnt vmcnt(0)
    v_cmp_gt_u32 s[{S_VCC}:{S_VCC+1}], {l}, v{V_POLL}
    s_sub_u32 s74, s74, 1
    s_cbranch_scc1 L_back{pid}
    s_nop 1
    s_cmp_lg_u64 s[{S_VCC}:{S_VCC+1}], 0
    s_cbranch_scc1 L_slow{pid}
    s_branch L_back{pid}""")
            at(tp, poll_issue)
            at(tchk, poll_check, 5)
            ops = []
            dls = []
            for j in range(1, 8):
                for s_ in range(2):
                    voff = V_LANE16 if q < 2 else V_LANE16B
                    off = (q % 2) * 2048 + s_ * 1024
                    def pre(l=l, j=j, s_=s_):
                        set_soff(S_T+6, S_XOFF+j, XB[l])
                        return False
                    def post(l=l, q=q, j=j, s_=s_, voff=voff, off=off):
                        g.vm(f"buffer_load_dwordx4 {xf_reg(q, j, s_)}, v{voff}, s[{S_WS}:{S_WS+3}], s{S_T+6} offen offset:{off} sc1",
                             ("x", l, q, j))
                    ops.append((pre, post))
                    dls.append(use_t[(l, q, j, s_)] - LAT)
            if not OPT["NOX"]:
                vsched("x", tchk + 1, dls, ops)

    heads = {c: 0 for c in vmq}
    last = -100
    late = []
    t = 0
    while any(heads[c] < len(vmq[c]) for c in vmq):
        cands = [(vmq[c][heads[c]][1], c) for c in vmq if heads[c] < len(vmq[c]) and vmq[c][heads[c]][0] <= t]
        if cands:
            dl, c = min(cands)
            if (t % OPT["R"] == 1 % OPT["R"]) or (dl <= t and t - last >= 1):
                ea, dl, pre, post = vmq[c][heads[c]]
                fill[t].append(pre)
                fill2[t].append(post)
                heads[c] += 1
                last = t
                if t > dl:
                    late.append((c, t, dl))
        t += 1
    if late:
        sys.stderr.write(f"late vm ops: {len(late)}  worst {max(x[1]-x[2] for x in late)}  first {late[:3]}\n")

    def wf_regs(t):
        return WF + (t % NWF) * 4

    def issue_reads(t):
        l, beta, P, q, ns, i, j, s_ = mf[t]
        unit = unit_of(beta)
        base = unit * UNIT
        vb = V_TR + 2 * (base >> 16) + ns
        b = wf_regs(t)
        for tt in range(2):
            if l == 0:
                off = (32 * j + 16 * s_ + 4 * tt) * 128
            else:
                off = (32 * j + 16 * s_ + 8 * tt) * 128
            off += base & 0xffff
            g.lds(f"ds_read_b64_tr_b16 v[{b+2*tt}:{b+2*tt+1}], v{vb} offset:{off}", ("wf", t))

    for t in range(D):
        issue_reads(t)
    for t in range(NT):
        if OPT["STAMP"] == 1 and t % 32 == 0:
            stamp()
        if OPT["STAMP"] == 2 and OPT["ST0"] <= t < OPT["ST0"] + 56 * OPT["STEP"] and (t - OPT["ST0"]) % OPT["STEP"] == 0:
            stamp()
        for op in fill.get(t, []):
            op()
        if t == switch_at:
            switch_tr()
        if t + D < NT:
            issue_reads(t + D)
        for op in fill2.get(t, []):
            op()
        l, beta, P, q, ns, i, j, s_ = mf[t]
        vmtag = ("x", l, q, j) if (l > 0 and j > 0) else None
        ldtag = ("wf", t + 1) if (t % 2 == 0 and t + 1 < NT) else ("wf", t)
        g.wait(vm=vmtag, lds=ldtag)
        b = wf_regs(t)
        a = ACC + i * 16
        e(f"v_mfma_f32_32x32x16_bf16 v[{a}:{a+15}], v[{b}:{b+3}], {xf_reg(q, j, s_)}, v[{a}:{a+15}]")
    e("s_nop 15")
    for t in range(NT, NT + 200):
        if t in fill:
            for op in fill[t]:
                op()
    extra = [t for t in fill if t >= NT + 200]
    assert not extra, extra
    stamp()
    stamp(3)
    e("s_waitcnt vmcnt(0)")
    stamp()
    if OPT["STAMP"]:
        e(f"s_lshl_b32 s70, s2, 2")
        e(f"s_add_u32 s70, s70, s{S_WV}")
        e(f"s_lshl_b32 s70, s70, 8")
        e(f"s_add_u32 s70, s70, {1<<20}")
        e(f"v_lshlrev_b32 v{V_T0}, 2, v0")
        e(f"v_writelane_b32 v{V_ST}, s74, 63")
        e(f"v_writelane_b32 v{V_ST}, s{S_FAST}, 62")
        e(f"buffer_store_dword v{V_ST}, v{V_T0}, s[{S_WS}:{S_WS+3}], s70 offen")
        e("s_waitcnt vmcnt(0)")
    g.label("L_end")
    e("s_endpgm")
    for sl in slow:
        g.L.append(sl)
    g.L.append(""".section .rodata,"a"
.p2align 6
.amdhsa_kernel standalone__dcn_v2_cross__recsys_kernel
  .amdhsa_next_free_vgpr 512
  .amdhsa_next_free_sgpr 102
  .amdhsa_accum_offset 256
  .amdhsa_group_segment_fixed_size 0
  .amdhsa_kernarg_size 48
  .amdhsa_user_sgpr_count 2
  .amdhsa_user_sgpr_kernarg_segment_ptr 1
  .amdhsa_system_sgpr_workgroup_id_x 1
.end_amdhsa_kernel""")
    return "\n".join(g.L) + "\n"


if __name__ == "__main__":
    out = sys.argv[1] if len(sys.argv) > 1 else "standalone__dcn_v2_cross__recsys.s"
    open(out, "w").write(gen())
```

```python
import sys
from collections import defaultdict

OPT = dict(
    D=4,
    BPOS=16,
    INTER_LAST=1,
    CAP=5,
    CODEPF=0,
    NOPOLL=0,
    NOX=0,
    NOW=0,
    LATW=64,
    MAP=0,
    WARM=0,
    EPI_PRI=1,
    XLEAD=30,
    LAT=22,
    R=2,
    POLL_CHK=12,
    FLAG_DELAY=16,
    STAMP=0,
    TOUCH=4,
    TW1=64,
    TW2=300,
    FLAG_VIS=6,
    FAST=1,
    ST0=192,
    STEP=2,
)
for a in sys.argv[2:]:
    k, v = a.split("=")
    OPT[k] = int(v)

D = OPT["D"]
NWF = D + 2

ACC = 64
X0F = 128
OWN = 192
WF = 224
TMPN = 248
TMPN2 = 34
V_LANE16 = 1
V_LANE16B = 2
V_TR = 3
V_WD = 9
V_FLAGST = 13
V_POLLOFF = 14
V_POLL = 15
V_BA = 16
V_BB = 56
V_DUM = 60
V_BOFF = 24
V_OOFF = 25
V_ET = 26
V_XR = 34
V_XD = 42
V_T0 = 46
V_ATOM = 54
V_RDY = 49
V_T64 = 48
V_ONE = 55
V_OWR = 52
V_TCH = 51

S_X0, S_W, S_B, S_OUT, S_WS, S_DBG = 4, 8, 12, 16, 20, 24
S_RB, S_C, S_WV = 28, 29, 30
S_WROW = 32
S_XOFF = 34
S_LDSW = 42
S_T = 44
S_ROW0B = 52
S_WROW0 = 54
S_BOFF = 56
S_OUTOFF = 57
S_MASK = 58
S_VCC = 60
S_TS = 62
S_OWNB = 77
S_TW = 78
S_FAST = 76
S_XCC = 75
S_W0Q = 82
S_XPG = 86

XB = {1: 16 << 20, 2: 24 << 20}
UNIT = 32768
NUNIT = 5


def unit_of(beta):
    return {0: 0, 1: 1, 2: 2, 3: 0, 4: 1}.get(beta, (beta + 2) % 5)


def xf_reg(q, j, s):
    if j == 0:
        b = OWN + (q * 2 + s) * 4
        return f"v[{b}:{b+3}]"
    b = ((q * 7 + (j - 1)) * 2 + s) * 4
    return f"a[{b}:{b+3}]"


class G:
    def __init__(s):
        s.L = []
        s.ldsq = []
        s.vmq = []
        s.cnt = 0

    def e(s, txt):
        s.L.append("    " + txt)
        s.cnt += 1

    def label(s, name):
        s.L.append(name + ":")

    def c(s, txt):
        s.L.append("    ; " + txt)

    def lds(s, txt, tag=None):
        s.e(txt)
        s.ldsq.append(tag)

    def vm(s, txt, tag=None):
        s.e(txt)
        s.vmq.append(tag)

    def wait(s, vm=None, lds=None):
        parts = []
        if vm is not None and vm in s.vmq:
            idx = len(s.vmq) - 1 - s.vmq[::-1].index(vm)
            n = len(s.vmq) - 1 - idx
            s.vmq = s.vmq[idx + 1:]
            parts.append(f"vmcnt({min(n, 63)})")
        if lds is not None and lds in s.ldsq:
            idx = len(s.ldsq) - 1 - s.ldsq[::-1].index(lds)
            n = len(s.ldsq) - 1 - idx
            s.ldsq = s.ldsq[idx + 1:]
            parts.append(f"lgkmcnt({min(n, 15)})")
        if parts:
            s.e("s_waitcnt " + " ".join(parts))

    def wait_all(s):
        s.e("s_waitcnt vmcnt(0) lgkmcnt(0)")
        s.vmq = []
        s.ldsq = []


ORD = [
    [(0, 0), (1, 0), (0, 1), (0, 2), (0, 3), (1, 1), (1, 2), (1, 3)],
    [(0, 0), (0, 1), (1, 0), (0, 2), (0, 3), (1, 1), (1, 2), (1, 3)],
    [(0, 0), (1, 0), (0, 1), (1, 1), (0, 2), (1, 2), (0, 3), (1, 3)],
]
NBLK = 24
NT = NBLK * 32


def gen():
    g = G()
    e = g.e
    hdr = """; DCN-v2 cross network, fused 3-layer kernel (generated by gen.py)
; @launch grid=(256,1,1) block=(256,1,1) lds=163840
.amdgcn_target "amdgcn-amd-amdhsa--gfx950"
.text
.globl standalone__dcn_v2_cross__recsys_kernel
.p2align 8
.type standalone__dcn_v2_cross__recsys_kernel,@function
standalone__dcn_v2_cross__recsys_kernel:"""
    g.L.append(hdr)
    slow = []

    e("s_cmp_ge_u32 s2, 256")
    e("s_cbranch_scc1 L_end")
    e("s_load_dwordx4 s[44:47], s[0:1], 0")
    e("s_load_dwordx4 s[48:51], s[0:1], 16")
    e("s_load_dwordx4 s[64:67], s[0:1], 32")
    if OPT["CODEPF"]:
        e("s_getpc_b64 s[90:91]")
        g.label("L_pc")
        e("s_lshr_b32 s92, s2, 3")
        e("s_lshl_b32 s92, s92, 8")
        e("v_add_u32 v47, s92, v0")
        e("v_lshlrev_b32 v47, 6, v47")
        e("v_mov_b32 v48, L_codeend-L_pc-64")
        e("v_min_u32 v47, v47, v48")
        e("global_load_dword v63, v47, s[90:91]")
    e("v_lshrrev_b32 v46, 6, v0")
    e("v_and_b32 v0, 63, v0")
    e("s_and_b32 s68, s2, 7")
    e("s_lshr_b32 s69, s2, 3")
    e(f"v_readfirstlane_b32 s{S_WV}, v46")
    if OPT["MAP"] == 0:
        e(f"s_and_b32 s{S_C}, s69, 7")
        e("s_lshr_b32 s69, s69, 3")
    else:
        e(f"s_lshr_b32 s{S_C}, s69, 2")
        e("s_and_b32 s69, s69, 3")
    e("s_lshl_b32 s68, s68, 2")
    e(f"s_add_u32 s{S_RB}, s68, s69")
    e("s_waitcnt lgkmcnt(0)")
    for (S, lo, size) in ((S_X0, 44, 8 << 20), (S_W, 46, 6 << 20), (S_B, 48, 6144), (S_OUT, 50, 8 << 20),
                          (S_DBG, 64, 256), (S_WS, 66, 256 << 20)):
        e(f"s_mov_b32 s{S}, s{lo}")
        e(f"s_and_b32 s{S+1}, s{lo+1}, 0xffff")
        e(f"s_mov_b32 s{S+2}, {size}")
        e(f"s_mov_b32 s{S+3}, 0x00020000")
    e(f"s_mov_b32 s{S_MASK}, 0xffff0000")
    e("s_mov_b32 s74, 200000")
    e(f"s_lshl_b32 s{S_LDSW}, s{S_WV}, 13")
    e(f"s_lshl_b32 s68, s{S_RB}, 7")
    e(f"s_lshl_b32 s69, s{S_WV}, 5")
    e("s_add_u32 s68, s68, s69")
    e(f"s_lshl_b32 s{S_ROW0B}, s68, 11")
    e(f"s_lshl_b32 s{S_BOFF}, s{S_C}, 8")
    e(f"s_add_u32 s{S_OUTOFF}, s{S_ROW0B}, s{S_BOFF}")
    e(f"s_lshl_b32 s68, s{S_RB}, 2")
    e(f"s_add_u32 s68, s68, s{S_WV}")
    e("s_lshl_b32 s69, s68, 16")
    for j in range(8):
        e(f"s_add_u32 s70, s{S_C}, {j}")
        e("s_and_b32 s70, s70, 7")
        e("s_lshl_b32 s70, s70, 13")
        e(f"s_add_u32 s{S_XOFF+j}, s69, s70")
    for i in range(2):
        e(f"s_lshl_b32 s70, s{S_WV}, 1")
        e(f"s_add_u32 s70, s70, {i}")
        e(f"s_add_u32 s70, s70, s{S_C}")
        e("s_and_b32 s70, s70, 7")
        e("s_lshl_b32 s70, s70, 18")
        e(f"s_add_u32 s{S_WROW+i}, s70, s{S_BOFF}")
    e(f"s_lshr_b32 s71, s{S_WV}, 1")
    e(f"s_add_u32 s71, s71, s{S_C}")
    e(f"s_lshl_b32 s73, s{S_WV}, 1")
    e("s_and_b32 s73, s73, 3")
    e("s_lshl_b32 s73, s73, 16")
    e(f"s_add_u32 s73, s73, s{S_BOFF}")
    for q in range(4):
        e(f"s_add_u32 s70, s71, {2*q}")
        e("s_and_b32 s70, s70, 7")
        e("s_lshl_b32 s70, s70, 18")
        e(f"s_add_u32 s{S_W0Q+q}, s70, s73")
    for n in range(8):
        e(f"s_add_u32 s70, s{S_C}, {n}")
        e("s_and_b32 s70, s70, 7")
        e("s_lshl_b32 s70, s70, 8")
        e(f"s_add_u32 s{S_XPG+n}, s70, s{S_ROW0B}")
    e("s_lshl_b32 s72, s68, 7")
    e(f"s_lshl_b32 s73, s{S_C}, 2")
    e("s_add_u32 s73, s73, s72")
    e(f"v_lshlrev_b32 v{V_LANE16}, 4, v0")
    e(f"v_add_u32 v{V_LANE16B}, 4096, v{V_LANE16}")
    T = V_T0
    e(f"v_lshrrev_b32 v{T}, 5, v0")
    e(f"v_and_b32 v{T+1}, 31, v0")
    e(f"v_lshrrev_b32 v{T+2}, 2, v0")
    e(f"v_and_b32 v{T+2}, 3, v{T+2}")
    e(f"v_and_b32 v{T+3}, 3, v0")
    e(f"v_lshrrev_b32 v{T+4}, 4, v0")
    e(f"v_and_b32 v{T+4}, 1, v{T+4}")
    e(f"v_lshlrev_b32 v{V_FLAGST}, 5, v0")
    e(f"v_add_u32 v{V_FLAGST}, s73, v{V_FLAGST}")
    e(f"v_mov_b32 v{T+5}, 0x7ffffff0")
    e("v_cmp_gt_u32 vcc, 4, v0")
    e("s_nop 1")
    e(f"v_cndmask_b32 v{T+6}, v{T+5}, v{V_FLAGST}, vcc")
    e("v_cmp_gt_u32 vcc, 1, v0")
    e("s_nop 1")
    e(f"v_cndmask_b32 v{V_FLAGST}, v{T+5}, v{V_FLAGST}, vcc")
    e(f"v_mov_b32 v{T+7}, 0")
    g.vm(f"buffer_store_dword v{T+7}, v{T+6}, s[{S_WS}:{S_WS+3}], 0 offen sc1", "fz")
    e(f"v_and_b32 v{V_POLLOFF}, 7, v0")
    e(f"v_lshlrev_b32 v{V_POLLOFF}, 2, v{V_POLLOFF}")
    e(f"v_add_u32 v{V_POLLOFF}, s72, v{V_POLLOFF}")
    e(f"s_lshl_b32 s70, s{S_RB}, 2")
    e(f"v_mov_b32 v{V_ATOM}, s70")
    e(f"s_lshl_b32 s71, s{S_WV}, 6")
    e(f"v_or_b32 v{T+7}, s71, v0")
    e(f"v_cmp_eq_u32 vcc, 0, v{T+7}")
    e("s_nop 1")
    e(f"v_cndmask_b32 v{V_ATOM}, v{T+5}, v{V_ATOM}, vcc")
    e(f"s_getreg_b32 s{S_XCC}, hwreg(HW_REG_XCC_ID)")
    e(f"s_and_b32 s{S_XCC}, s{S_XCC}, 7")
    e(f"s_lshl_b32 s{S_XCC}, s{S_XCC}, 2")
    e(f"s_lshl_b32 s70, 1, s{S_XCC}")
    e(f"v_mov_b32 v{V_ONE}, s70")
    e(f"s_lshl_b32 s{S_XCC}, 8, s{S_XCC}")
    e(f"v_lshrrev_b32 v{T+5}, 3, v0")
    e(f"v_and_b32 v{T+6}, 7, v0")
    e(f"v_lshrrev_b32 v{T+7}, 4, v0")
    e(f"v_and_b32 v{T+7}, 1, v{T+7}")
    e(f"v_lshlrev_b32 v{T+7}, 2, v{T+7}")
    e(f"v_xor_b32 v{T+6}, v{T+6}, v{T+7}")
    e(f"v_lshlrev_b32 v{T+6}, 4, v{T+6}")
    e(f"v_lshlrev_b32 v{T+5}, 11, v{T+5}")
    e(f"v_add_u32 v{V_WD}, v{T+5}, v{T+6}")
    for i in range(1, 4):
        e(f"v_add_u32 v{V_WD+i}, {i*15360}, v{V_WD}")
    e(f"v_lshrrev_b32 v{T+5}, 1, v{T+2}")
    e(f"v_lshlrev_b32 v{T+5}, 6, v{T+5}")
    e(f"v_lshlrev_b32 v{T+6}, 5, v{T+4}")
    e(f"v_add_u32 v{T+5}, v{T+5}, v{T+6}")
    e(f"v_lshlrev_b32 v{T+6}, 3, v{T+3}")
    e(f"v_add_u32 v{T+5}, v{T+5}, v{T+6}")
    e(f"v_lshlrev_b32 v{T+6}, 7, v{T+2}")
    e(f"v_add_u32 v{T+5}, v{T+5}, v{T+6}")
    e(f"v_lshlrev_b32 v{T+6}, 10, v{T}")
    e(f"v_add_u32 v{V_TR}, v{T+5}, v{T+6}")
    e(f"v_xor_b32 v{V_TR+1}, 64, v{V_TR}")
    for b in (1, 2):
        e(f"v_add_u32 v{V_TR+2*b}, {b*65536}, v{V_TR}")
        e(f"v_add_u32 v{V_TR+2*b+1}, {b*65536}, v{V_TR+1}")
    e(f"v_lshlrev_b32 v{V_BOFF}, 1, v{T+1}")
    e(f"v_mov_b32 v{T+5}, 0x7ffffff0")
    e("v_cmp_gt_u32 vcc, 32, v0")
    e("s_nop 1")
    e(f"v_cndmask_b32 v{V_BOFF}, v{T+5}, v{V_BOFF}, vcc")
    e(f"v_mov_b32 v{T+5}, 0x3f80")
    e(f"v_cndmask_b32 v{V_BB}, 0, v{T+5}, vcc")
    for r in (V_BB+1, V_BB+2, V_BB+3, V_BA+1, V_BA+2, V_BA+3, V_BA+5, V_BA+6, V_BA+7):
        e(f"v_mov_b32 v{r}, 0")
    e(f"v_lshlrev_b32 v{V_OOFF}, 11, v{T+1}")
    e(f"v_lshlrev_b32 v{T+6}, 4, v{T}")
    e(f"v_add_u32 v{V_OOFF}, v{V_OOFF}, v{T+6}")
    e(f"v_lshrrev_b32 v{T+5}, 4, v0")
    e(f"v_and_b32 v{T+6}, 15, v0")
    e(f"v_xor_b32 v{T+6}, v{T+6}, v{T+5}")
    e(f"v_lshlrev_b32 v{T+5}, 11, v{T+5}")
    for i in range(4):
        e(f"v_xor_b32 v{T+7}, {4*i}, v{T+6}")
        e(f"v_lshlrev_b32 v{T+7}, 4, v{T+7}")
        e(f"v_add_u32 v{T+7}, v{T+7}, v{T+5}")
        e(f"v_add_u32 v{V_XD+i}, {i*(8192-1024)}, v{T+7}")
    e(f"v_and_b32 v{T+5}, 15, v{T+1}")
    e(f"v_xor_b32 v{T+6}, v{T+5}, v{T}")
    e(f"v_lshlrev_b32 v{T+6}, 4, v{T+6}")
    e(f"v_lshlrev_b32 v{T+7}, 8, v{T+1}")
    e(f"v_add_u32 v{T+7}, s{S_LDSW}, v{T+7}")
    e(f"v_add_u32 v{T+7}, {3*UNIT}, v{T+7}")
    e(f"v_add_u32 v{T+6}, v{T+6}, v{T+7}")
    for jj in range(8):
        e(f"v_xor_b32 v{V_XR+jj}, {32*jj}, v{T+6}")
    e(f"v_lshlrev_b32 v{T+5}, 4, v{T+5}")
    e(f"v_add_u32 v{V_OWR}, v{T+5}, v{T+7}")
    e(f"v_lshlrev_b32 v{T+5}, 3, v{T}")
    e(f"v_add_u32 v{V_OWR}, v{V_OWR}, v{T+5}")
    e(f"v_lshrrev_b32 v{V_TCH}, 4, v0")
    e(f"v_lshlrev_b32 v{V_TCH}, 11, v{V_TCH}")
    e(f"v_and_b32 v{T+5}, 15, v0")
    e(f"v_lshlrev_b32 v{T+5}, 7, v{T+5}")
    e(f"v_add_u32 v{V_TCH}, v{V_TCH}, v{T+5}")
    e(f"s_lshr_b32 s70, s2, 3")
    e(f"s_lshl_b32 s70, s70, 2")
    e(f"s_add_u32 s70, s70, s{S_WV}")
    e(f"s_lshl_b32 s70, s70, 14")
    e(f"s_mov_b32 s{S_TW}, s70")
    e(f"s_add_u32 s{S_TW+1}, s{S_TW}, {2<<20}")
    e(f"s_add_u32 s{S_TW+2}, s{S_TW}, {4<<20}")

    V_ST = 53
    stamp_n = [0]
    def stamp(kind=0):
        if not OPT["STAMP"]:
            return
        if (OPT["STAMP"] == 3) != (kind == 3):
            return
        if kind == 3:
            e(f"s_memrealtime s[{S_TS}:{S_TS+1}]")
        else:
            e(f"s_memtime s[{S_TS}:{S_TS+1}]")
        e("s_waitcnt lgkmcnt(0)")
        g.ldsq = []
        e(f"v_writelane_b32 v{V_ST}, s{S_TS}, {stamp_n[0]}")
        stamp_n[0] += 1
    if OPT["STAMP"]:
        e(f"v_mov_b32 v{V_ST}, 0")
    stamp()
    stamp(3)
    e(f"v_lshlrev_b32 v{V_T64}, 6, v0")

    m0_cur = [None]
    soff_cur = {}
    def set_m0(val):
        if m0_cur[0] != val:
            e(f"s_add_u32 m0, s{S_LDSW}, {val}")
            m0_cur[0] = val
            return True
        return False
    def set_soff(sreg, base, const):
        if soff_cur.get(sreg) != (base, const):
            e(f"s_add_u32 s{sreg}, s{base}, {const}")
            soff_cur[sreg] = (base, const)
            return True
        return False

    def w_dma(beta):
        l, b = divmod(beta, 8)
        P, q = ORD[l][b]
        unit = unit_of(beta)
        out = []
        for part in range(2):
            if l == 0:
                const = P * 128 + part * 65536
                base = S_W0Q + q
            else:
                const = l * (2 << 20) + q * 32 * 2048 + P * 128
                base = S_WROW + part
            for i in range(4):
                off = f" offset:{i*1024}" if i else ""
                def pre(part=part, base=base, const=const):
                    a = set_m0(unit*UNIT + part*4096)
                    b_ = set_soff(S_T, base, const)
                    return a and not b_
                def post(i=i, off=off):
                    g.vm(f"buffer_load_dwordx4 v{V_WD+i}, s[{S_W}:{S_W+3}], s{S_T} offen{off} lds", ("w", beta))
                out.append((pre, post))
        return out

    def x0_dma(unit, n, tag, first_wait=None):
        out = []
        for half in range(2):
            for i in range(4):
                off = f" offset:{i*1024}" if i else ""
                def pre(i=i, half=half):
                    if first_wait is not None and i == 0 and half == 0:
                        g.wait(lds=first_wait)
                    a = set_m0(unit*UNIT + half*4096)
                    b_ = set_soff(S_T+7, S_XPG+n, half*16*2048)
                    return a and not b_
                def post(i=i, off=off):
                    g.vm(f"buffer_load_dwordx4 v{V_XD+i}, s[{S_X0}:{S_X0+3}], s{S_T+7} offen{off} lds", tag)
                out.append((pre, post))
        return out

    def runv(ops):
        for pre, post in ops:
            if pre():
                e("s_nop 0")
            post()

    def x0_read_ops(unit, q, half, tag):
        ops = [lambda: g.wait(vm=tag)]
        for jj in range(8):
            j = 4 * half + jj // 2
            s_ = jj % 2
            base = unit * UNIT - 3 * UNIT
            if base >= 0:
                ops.append(lambda j=j, s_=s_, jj=jj, base=base: g.lds(
                    f"ds_read_b128 {xf_reg(q, j, s_)}, v{V_XR+jj} offset:{base}", ("x0r", tag)))
            else:
                def f(j=j, s_=s_, jj=jj, base=base):
                    e(f"v_add_u32 v{V_T0}, {base}, v{V_XR+jj}")
                    g.lds(f"ds_read_b128 {xf_reg(q, j, s_)}, v{V_T0}", ("x0r", tag))
                ops.append(f)
        return ops

    def run(ops):
        for op in ops:
            op()

    def bias_load(l, i):
        g.vm(f"buffer_load_ushort v{V_BA+4*(i%2)}, v{V_BOFF}, s[{S_B}:{S_B+3}], s{S_T+1+l} offen offset:{64*i}", ("b", l, i))

    def bias_mfma(l, i):
        g.wait(vm=("b", l, i))
        a = ACC + 16 * i
        ba = V_BA + 4 * (i % 2)
        e(f"v_mfma_f32_32x32x16_bf16 v[{a}:{a+15}], v[{ba}:{ba+3}], v[{V_BB}:{V_BB+3}], 0")

    def touch_w(l):
        for k in range(4):
            e(f"s_add_u32 s70, s{S_TW+l}, {4096*k}")
            g.vm(f"buffer_load_dword v{V_DUM+k}, v{V_T64}, s[{S_W}:{S_W+3}], s70 offen", "touch")

    for l in range(3):
        e(f"s_add_u32 s{S_T+1+l}, s{S_BOFF}, {l*2048}")
    bias_load(0, 0)
    bias_load(0, 1)
    runv(w_dma(0))
    PG = {(0, 0): 3, (0, 1): 4, (1, 0): 2, (1, 1): 3, (2, 0): 4, (2, 1): 3, (3, 0): 4, (3, 1): 3}
    def ptag(q, h):
        return ("x0", q, h)
    runv(x0_dma(3, 0, ptag(0, 0)))
    if OPT["TOUCH"] & 4:
        e(f"v_lshrrev_b32 v{V_T0}, 4, v0")
        e(f"v_lshlrev_b32 v{V_T0}, 21, v{V_T0}")
        e(f"v_and_b32 v{V_T0+1}, 15, v0")
        e(f"v_lshlrev_b32 v{V_T0+1}, 7, v{V_T0+1}")
        e(f"v_add_u32 v{V_T0}, v{V_T0}, v{V_T0+1}")
        e(f"s_lshl_b32 s70, s2, 2")
        e(f"s_add_u32 s70, s70, s{S_WV}")
        e(f"s_lshl_b32 s70, s70, 11")
        g.vm(f"buffer_load_dword v{V_DUM}, v{V_T0}, s[{S_W}:{S_W+3}], s70 offen", "touch")
    if OPT["TOUCH"] & 8:
        e(f"s_lshl_b32 s70, s{S_C}, 2")
        e(f"s_add_u32 s70, s70, s{S_WV}")
        e(f"s_lshl_b32 s70, s70, 13")
        e(f"s_lshl_b32 s71, s{S_RB}, 18")
        e(f"s_add_u32 s70, s70, s71")
        g.vm(f"buffer_load_dword v{V_DUM+2}, v{V_TCH}, s[{S_X0}:{S_X0+3}], s70 offen", "touch")
    if OPT["TOUCH"] & 1:
        e(f"s_lshl_b32 s70, s{S_C}, 2")
        e(f"s_add_u32 s70, s70, s{S_WV}")
        e(f"s_lshl_b32 s70, s70, 13")
        e(f"s_lshl_b32 s71, s{S_RB}, 18")
        e(f"s_add_u32 s70, s70, s71")
        g.vm(f"buffer_load_dword v{V_DUM+2}, v{V_TCH}, s[{S_X0}:{S_X0+3}], s70 offen", "touch")
        touch_w(0)
    runv(x0_dma(4, 1, ptag(0, 1)))
    runv(x0_dma(2, 2, ptag(1, 0)))
    runv(w_dma(1))
    if OPT["WARM"]:
        e(f"s_add_u32 s70, s{S_XOFF}, {XB[1]}")
        g.vm(f"buffer_load_dword v{V_DUM+3}, v{V_LANE16}, s[{S_WS}:{S_WS+3}], s70 offen", "touch")
        e(f"s_add_u32 s70, s{S_XOFF}, {XB[2]}")
        g.vm(f"buffer_load_dword v{V_DUM+3}, v{V_LANE16}, s[{S_WS}:{S_WS+3}], s70 offen", "touch")
        g.vm(f"buffer_load_dword v{V_DUM+3}, v{V_LANE16}, s[{S_OUT}:{S_OUT+3}], s{S_OUTOFF} offen", "touch")
    stamp()
    run(x0_read_ops(3, 0, 0, ptag(0, 0)))
    for pc in range(16):
        i, gg = divmod(pc, 4)
        r = X0F + i * 16 + gg * 4
        e(f"v_xor_b32 v{V_T0}, {16*pc}, v{V_OWR}")
        g.lds(f"ds_read_b64 v[{r+2}:{r+3}], v{V_T0}", ("own", pc))
    for pc in range(16):
        i, gg = divmod(pc, 4)
        r = X0F + i * 16 + gg * 4
        g.wait(lds=("own", pc))
        if pc == 15:
            runv(x0_dma(3, 3, ptag(1, 1)))
        e(f"v_lshlrev_b32 v{r}, 16, v{r+2}")
        e(f"v_and_b32 v{r+1}, s{S_MASK}, v{r+2}")
        e(f"v_lshlrev_b32 v{r+2}, 16, v{r+3}")
        e(f"v_and_b32 v{r+3}, s{S_MASK}, v{r+3}")
    stamp()
    e("s_barrier")
    g.vm(f"buffer_atomic_add v{V_ONE}, v{V_ATOM}, s[{S_DBG}:{S_DBG+3}], 0 offen sc1", "atom")

    fill = defaultdict(list)
    fill2 = defaultdict(list)
    used = defaultdict(int)
    CAP = OPT["CAP"]
    for t in range(NT + 200):
        used[t] = 2 + (1 if t % 2 == 0 else 0) if t < NT else 0
        if t % OPT["R"] == 1 % OPT["R"] and t < NT - 64:
            used[t] += 2

    def at(t, op, cost=1):
        fill[t].append(op)
        used[t] += cost

    def chain(t0, ops, cap=None):
        t = t0
        c = cap if cap is not None else CAP
        for op in ops:
            while used[t] >= c:
                t += 1
            at(t, op)
        return t + 1

    vmq = defaultdict(list)
    def vsched(cls, earliest, deadline, ops):
        for n, (pre, post) in enumerate(ops):
            dl = deadline[n] if isinstance(deadline, (list, tuple)) else deadline
            vmq[cls].append((earliest, dl, pre, post))

    mf = [None] * NT
    first_use = {}
    last_use = {}
    done = {}
    start = {}
    seen = set()
    use_t = {}
    for beta in range(NBLK):
        l, b = divmod(beta, 8)
        P, q = ORD[l][b]
        firstq = (l, q) not in seen
        seen.add((l, q))
        lastP = all(ORD[l][bb][0] != P for bb in range(b + 1, 8))
        inter = firstq and (not lastP or OPT["INTER_LAST"])
        if inter:
            seq = [(ns, j, s_) for j in range(8) for ns in range(2) for s_ in range(2)]
        else:
            seq = [(ns, j, s_) for ns in range(2) for j in range(8) for s_ in range(2)]
        for n, (ns, j, s_) in enumerate(seq):
            i = 2 * P + ns
            t = beta * 32 + n
            mf[t] = (l, beta, P, q, ns, i, j, s_)
            first_use.setdefault((l, q), t)
            use_t.setdefault((l, q, j, s_), t)
            last_use[(l, q)] = t
            done[(l, i)] = t
            start.setdefault((l, i), t)
    LAT = OPT["LAT"]
    for l in range(3):
        for i in range(4):
            ts = start[(l, i)]
            fill[ts].insert(0, lambda l=l, i=i: bias_mfma(l, i))
            used[ts] += 3
            if not (l == 0 and i < 2):
                pl, pi = (l, i - 2) if i >= 2 else (l - 1, i + 2)
                tl = max(start[(pl, pi)] + 2, ts - 48)
                at(tl, lambda l=l, i=i: bias_load(l, i))
    BPOS = OPT["BPOS"]
    for beta in range(NBLK):
        t = beta * 32 + BPOS
        if beta + 1 < NBLK:
            at(t, lambda beta=beta: g.wait(vm=("w", beta + 1)))
            at(t, lambda: e("s_barrier"))
        if beta <= 3:
            nxt = [beta + 2]
        elif beta == 4:
            nxt = [6, 7, 8]
        else:
            nxt = [beta + 4]
        for nb in nxt:
            if nb < NBLK and not OPT["NOW"]:
                vsched("w", t + 1, 32 * (nb - 1) + BPOS - OPT["LATW"], w_dma(nb))
    def stage(t, q, h, nxt, tnext=None):
        tag = ptag(q, h)
        u = PG[(q, h)]
        t = chain(t, x0_read_ops(u, q, h, tag))
        if nxt is not None:
            n = 2 * nxt[0] + nxt[1]
            vsched("x0", t, tnext - LAT, x0_dma(u, n, ptag(*nxt), first_wait=("x0r", tag)))
    ST = {(0, 1): 2, (1, 0): 8, (1, 1): 34, (2, 0): 56, (2, 1): 90, (3, 0): 112, (3, 1): 132}
    stage(ST[(0, 1)], 0, 1, (2, 0), ST[(2, 0)])
    stage(ST[(1, 0)], 1, 0, None)
    stage(ST[(1, 1)], 1, 1, (2, 1), ST[(2, 1)])
    stage(ST[(2, 0)], 2, 0, (3, 0), ST[(3, 0)])
    stage(ST[(2, 1)], 2, 1, (3, 1), ST[(3, 1)])
    stage(ST[(3, 0)], 3, 0, None)
    stage(ST[(3, 1)], 3, 1, None)
    if OPT["TOUCH"] & 2:
        at(OPT["TW1"], lambda: touch_w(1), 8)
        at(OPT["TW2"], lambda: touch_w(2), 8)
    def switch_tr():
        e(f"v_lshrrev_b32 v{V_T0}, 5, v0")
        e(f"v_lshlrev_b32 v{V_T0}, 9, v{V_T0}")
        for k in range(6):
            e(f"v_sub_u32 v{V_TR+k}, v{V_TR+k}, v{V_T0}")
    switch_at = 256 - D

    def epi_ops(l, i, dst):
        ops = []
        for d in range(8):
            a0 = ACC + i * 16 + 2 * d
            x0 = X0F + i * 16 + 2 * d
            src = OWN + i * 8 + d
            t0 = V_ET + (d % 4) * 2
            if l == 0:
                ops.append(lambda a0=a0, x0=x0, t0=t0: e(f"v_fma_f32 v{t0}, v{x0}, v{a0}, v{x0}"))
                ops.append(lambda a0=a0, x0=x0, t0=t0: e(f"v_fma_f32 v{t0+1}, v{x0+1}, v{a0+1}, v{x0+1}"))
            else:
                ops.append(lambda src=src, t0=t0: e(f"v_lshlrev_b32 v{t0}, 16, v{src}"))
                ops.append(lambda src=src, t0=t0: e(f"v_and_b32 v{t0+1}, s{S_MASK}, v{src}"))
                ops.append(lambda a0=a0, x0=x0, t0=t0: e(f"v_fma_f32 v{t0}, v{x0}, v{a0}, v{t0}"))
                ops.append(lambda a0=a0, x0=x0, t0=t0: e(f"v_fma_f32 v{t0+1}, v{x0+1}, v{a0+1}, v{t0+1}"))
            ops.append(lambda t0=t0, d=d: e(f"v_cvt_pk_bf16_f32 v{dst+d}, v{t0}, v{t0+1}"))
        return ops

    def ready_issue():
        e(f"s_lshl_b32 s{S_T+5}, s{S_RB}, 2")
        e(f"v_mov_b32 v{V_RDY+1}, s{S_T+5}")
        g.vm(f"buffer_load_dword v{V_RDY}, v{V_RDY+1}, s[{S_DBG}:{S_DBG+3}], 0 offen sc1", "rdy")

    def ready_check():
        g.wait(vm="rdy")
        g.label("L_rdy")
        e(f"v_readfirstlane_b32 s70, v{V_RDY}")
        e("s_nop 3")
        e("s_lshr_b32 s71, s70, 4")
        e("s_and_b32 s71, s71, 0x0f0f0f0f")
        e("s_and_b32 s72, s70, 0x0f0f0f0f")
        e("s_add_u32 s71, s71, s72")
        e("s_mul_i32 s71, s71, 0x01010101")
        e("s_lshr_b32 s71, s71, 24")
        e("s_cmp_lg_u32 s71, 8")
        e("s_cbranch_scc1 L_rdy_slow")
        g.label("L_rdy_out")
        e(f"s_cmp_eq_u32 s70, s{S_XCC}")
        e(f"s_cselect_b32 s{S_FAST}, {OPT['FAST']}, 0")
        slow.append(f"""L_rdy_slow:
    s_sub_u32 s74, s74, 1
    s_cbranch_scc1 L_rdy_out
    buffer_load_dword v{V_RDY}, v{V_RDY+1}, s[{S_DBG}:{S_DBG+3}], 0 offen sc1
    s_waitcnt vmcnt(0)
    s_branch L_rdy""")

    flag_t = {}
    prev_epi_end = 0
    for l in range(3):
        for i in sorted(range(4), key=lambda i: done[(l, i)]):
            tc = max(done[(l, i)] + 4, prev_epi_end)
            own_last = max(t for t in range(l * 256, l * 256 + 256) if mf[t][3] == i and mf[t][6] == 0)
            direct = own_last < tc
            TM = TMPN if i % 2 == 0 else TMPN2
            dst = OWN + i * 8 if direct else TM
            tend = chain(tc, epi_ops(l, i, dst), cap=CAP + OPT["EPI_PRI"])
            prev_epi_end = tend
            if l < 2:
                assert tend <= start[(l + 1, i)], (l, i, tend, start[(l + 1, i)])
                assert tend <= use_t[(l + 1, i, 0, 0)], (l, i, tend)
            if l < 2:
                voff = V_LANE16 if i < 2 else V_LANE16B
                def st(dst=dst, voff=voff, l=l, i=i):
                    uid = f"{l}_{i}"
                    stamp(3)
                    set_soff(S_T+4, S_XOFF, XB[l+1])
                    e(f"s_cmp_lg_u32 s{S_FAST}, 0")
                    e(f"s_cbranch_scc1 L_sf{uid}")
                    for s_ in range(2):
                        r = dst + 4 * s_
                        off = (i % 2) * 2048 + s_ * 1024
                        e(f"buffer_store_dwordx4 v[{r}:{r+3}], v{voff}, s[{S_WS}:{S_WS+3}], s{S_T+4} offen offset:{off} sc1")
                    e(f"s_branch L_sj{uid}")
                    g.label(f"L_sf{uid}")
                    for s_ in range(2):
                        r = dst + 4 * s_
                        off = (i % 2) * 2048 + s_ * 1024
                        g.vm(f"buffer_store_dwordx4 v[{r}:{r+3}], v{voff}, s[{S_WS}:{S_WS+3}], s{S_T+4} offen offset:{off}", ("st", l, i))
                    g.label(f"L_sj{uid}")
                at(tend, st, 5)
                tf = tend + OPT["FLAG_DELAY"]
                flag_t[(l, i)] = tf
                def fl(l=l, i=i):
                    uid = f"{l}_{i}"
                    if OPT["NOPOLL"]:
                        return
                    stamp(3)
                    g.wait(vm=("st", l, i))
                    stamp(3)
                    e(f"v_mov_b32 v{V_T0+1}, {l+1}")
                    e(f"s_cmp_lg_u32 s{S_FAST}, 0")
                    e(f"s_cbranch_scc1 L_ff{uid}")
                    e(f"buffer_store_dword v{V_T0+1}, v{V_FLAGST}, s[{S_WS}:{S_WS+3}], 0 offen offset:{32*i} sc1")
                    e(f"s_branch L_fj{uid}")
                    g.label(f"L_ff{uid}")
                    g.vm(f"buffer_store_dword v{V_T0+1}, v{V_FLAGST}, s[{S_WS}:{S_WS+3}], 0 offen offset:{32*i}", "fl")
                    g.label(f"L_fj{uid}")
                at(tf, fl, 5)
                if l == 0 and tc == min(done[(0, k)] for k in range(4)) + 4:
                    at(tc - 50, ready_issue, 3)
                    at(tc - 4, ready_check, 12)
                if not direct:
                    tm = max(own_last + 1, tend + 1)
                    chain(tm, [lambda d=d, i=i, TM=TM: e(f"v_mov_b32 v{OWN+i*8+d}, v{TM+d}") for d in range(8)])
            else:
                for s_ in range(2):
                    r = dst + 4 * s_
                    at(tend + 1, lambda r=r: (e("s_nop 1"), e(f"v_permlane32_swap_b32 v{r}, v{r+2}"), e(f"v_permlane32_swap_b32 v{r+1}, v{r+3}")), 3)
                    at(tend + 2, lambda r=r, s_=s_, i=i: g.vm(
                        f"buffer_store_dwordx4 v[{r}:{r+3}], v{V_OOFF}, s[{S_OUT}:{S_OUT+3}], s{S_OUTOFF} offen offset:{64*i+32*s_}", "out"))
    pid = 0
    for l in (1, 2):
        for q in range(4):
            tfu = first_use[(l, q)]
            tfree = last_use[(l - 1, q)] + 1
            tchk = max(tfu - OPT["XLEAD"], tfree, flag_t[(l - 1, q)] + OPT["FLAG_VIS"] + OPT["POLL_CHK"])
            tp = tchk - OPT["POLL_CHK"]
            pid += 1

            def poll_issue(q=q, pid=pid):
                g.vm(f"buffer_load_dword v{V_POLL}, v{V_POLLOFF}, s[{S_WS}:{S_WS+3}], 0 offen offset:{32*q} sc1", ("poll", pid))

            def poll_check(l=l, q=q, pid=pid):
                if OPT["NOPOLL"]:
                    return
                stamp(3)
                g.wait(vm=("poll", pid))
                stamp(3)
                e(f"v_cmp_gt_u32 s[{S_VCC}:{S_VCC+1}], {l}, v{V_POLL}")
                e("s_nop 3")
                e(f"s_cmp_lg_u64 s[{S_VCC}:{S_VCC+1}], 0")
                e(f"s_cbranch_scc1 L_slow{pid}")
                g.label(f"L_back{pid}")
                stamp(3)
                slow.append(f"""L_slow{pid}:
    buffer_load_dword v{V_POLL}, v{V_POLLOFF}, s[{S_WS}:{S_WS+3}], 0 offen offset:{32*q} sc1
    s_waitcnt vmcnt(0)
    v_cmp_gt_u32 s[{S_VCC}:{S_VCC+1}], {l}, v{V_POLL}
    s_sub_u32 s74, s74, 1
    s_cbranch_scc1 L_back{pid}
    s_nop 1
    s_cmp_lg_u64 s[{S_VCC}:{S_VCC+1}], 0
    s_cbranch_scc1 L_slow{pid}
    s_branch L_back{pid}""")
            at(tp, poll_issue)
            at(tchk, poll_check, 5)
            ops = []
            dls = []
            for j in range(1, 8):
                for s_ in range(2):
                    voff = V_LANE16 if q < 2 else V_LANE16B
                    off = (q % 2) * 2048 + s_ * 1024
                    def pre(l=l, j=j, s_=s_):
                        set_soff(S_T+6, S_XOFF+j, XB[l])
                        return False
                    def post(l=l, q=q, j=j, s_=s_, voff=voff, off=off):
                        g.vm(f"buffer_load_dwordx4 {xf_reg(q, j, s_)}, v{voff}, s[{S_WS}:{S_WS+3}], s{S_T+6} offen offset:{off} sc1",
                             ("x", l, q, j))
                    ops.append((pre, post))
                    dls.append(use_t[(l, q, j, s_)] - LAT)
            if not OPT["NOX"]:
                vsched("x", tchk + 1, dls, ops)

    heads = {c: 0 for c in vmq}
    last = -100
    late = []
    t = 0
    while any(heads[c] < len(vmq[c]) for c in vmq):
        cands = [(vmq[c][heads[c]][1], c) for c in vmq if heads[c] < len(vmq[c]) and vmq[c][heads[c]][0] <= t]
        if cands:
            dl, c = min(cands)
            if (t % OPT["R"] == 1 % OPT["R"]) or (dl <= t and t - last >= 1):
                ea, dl, pre, post = vmq[c][heads[c]]
                fill[t].append(pre)
                fill2[t].append(post)
                heads[c] += 1
                last = t
                if t > dl:
                    late.append((c, t, dl))
        t += 1
    if late:
        sys.stderr.write(f"late vm ops: {len(late)}  worst {max(x[1]-x[2] for x in late)}  first {late[:3]}\n")

    def wf_regs(t):
        return WF + (t % NWF) * 4

    def issue_reads(t):
        l, beta, P, q, ns, i, j, s_ = mf[t]
        unit = unit_of(beta)
        base = unit * UNIT
        vb = V_TR + 2 * (base >> 16) + ns
        b = wf_regs(t)
        for tt in range(2):
            if l == 0:
                off = (32 * j + 16 * s_ + 4 * tt) * 128
            else:
                off = (32 * j + 16 * s_ + 8 * tt) * 128
            off += base & 0xffff
            g.lds(f"ds_read_b64_tr_b16 v[{b+2*tt}:{b+2*tt+1}], v{vb} offset:{off}", ("wf", t))

    for t in range(D):
        issue_reads(t)
    for t in range(NT):
        if OPT["STAMP"] == 1 and t % 32 == 0:
            stamp()
        if OPT["STAMP"] == 2 and OPT["ST0"] <= t < OPT["ST0"] + 56 * OPT["STEP"] and (t - OPT["ST0"]) % OPT["STEP"] == 0:
            stamp()
        for op in fill.get(t, []):
            op()
        if t == switch_at:
            switch_tr()
        if t + D < NT:
            issue_reads(t + D)
        for op in fill2.get(t, []):
            op()
        l, beta, P, q, ns, i, j, s_ = mf[t]
        vmtag = ("x", l, q, j) if (l > 0 and j > 0) else None
        ldtag = ("wf", t + 1) if (t % 2 == 0 and t + 1 < NT) else ("wf", t)
        g.wait(vm=vmtag, lds=ldtag)
        b = wf_regs(t)
        a = ACC + i * 16
        e(f"v_mfma_f32_32x32x16_bf16 v[{a}:{a+15}], v[{b}:{b+3}], {xf_reg(q, j, s_)}, v[{a}:{a+15}]")
    e("s_nop 15")
    for t in range(NT, NT + 200):
        if t in fill:
            for op in fill[t]:
                op()
    extra = [t for t in fill if t >= NT + 200]
    assert not extra, extra
    stamp()
    stamp(3)
    e("s_waitcnt vmcnt(0)")
    stamp()
    if OPT["STAMP"]:
        e(f"s_lshl_b32 s70, s2, 2")
        e(f"s_add_u32 s70, s70, s{S_WV}")
        e(f"s_lshl_b32 s70, s70, 8")
        e(f"s_add_u32 s70, s70, {1<<20}")
        e(f"v_lshlrev_b32 v{V_T0}, 2, v0")
        e(f"v_writelane_b32 v{V_ST}, s74, 63")
        e(f"v_writelane_b32 v{V_ST}, s{S_FAST}, 62")
        e(f"buffer_store_dword v{V_ST}, v{V_T0}, s[{S_WS}:{S_WS+3}], s70 offen")
        e("s_waitcnt vmcnt(0)")
    g.label("L_end")
    e("s_endpgm")
    for sl in slow:
        g.L.append(sl)
    g.label("L_codeend")
    g.L.append(""".section .rodata,"a"
.p2align 6
.amdhsa_kernel standalone__dcn_v2_cross__recsys_kernel
  .amdhsa_next_free_vgpr 512
  .amdhsa_next_free_sgpr 102
  .amdhsa_accum_offset 256
  .amdhsa_group_segment_fixed_size 0
  .amdhsa_kernarg_size 48
  .amdhsa_user_sgpr_count 2
  .amdhsa_user_sgpr_kernarg_segment_ptr 1
  .amdhsa_system_sgpr_workgroup_id_x 1
.end_amdhsa_kernel""")
    return "\n".join(g.L) + "\n"


if __name__ == "__main__":
    out = sys.argv[1] if len(sys.argv) > 1 else "standalone__dcn_v2_cross__recsys.s"
    open(out, "w").write(gen())
```

```python
import sys
from collections import defaultdict

OPT = dict(
    D=4,
    BPOS=16,
    INTER_LAST=1,
    CAP=5,
    GT0=-1,
    GT1=8,
    GT2=100,
    TS1=140,
    TS2=396,
    CODEPF=0,
    NOPOLL=0,
    NOX=0,
    NOW=0,
    LATW=64,
    MAP=0,
    WARM=0,
    EPI_PRI=1,
    XLEAD=30,
    LAT=22,
    R=2,
    POLL_CHK=12,
    FLAG_DELAY=16,
    STAMP=0,
    TOUCH=20,
    TW1=64,
    TW2=300,
    FLAG_VIS=6,
    FAST=1,
    ST0=192,
    STEP=2,
)
for a in sys.argv[2:]:
    k, v = a.split("=")
    OPT[k] = int(v)

D = OPT["D"]
NWF = D + 2

ACC = 64
X0F = 128
OWN = 192
WF = 224
TMPN = 248
TMPN2 = 34
V_LANE16 = 1
V_LANE16B = 2
V_TR = 3
V_WD = 9
V_FLAGST = 13
V_POLLOFF = 14
V_POLL = 15
V_BA = 16
V_BB = 56
V_DUM = 60
V_BOFF = 24
V_OOFF = 25
V_ET = 26
V_XR = 34
V_XD = 42
V_T0 = 46
V_ATOM = 54
V_RDY = 49
V_GT = 48
V_T64 = 48
V_TSL = 51
V_ONE = 55
V_OWR = 52
V_TCH = 51

S_X0, S_W, S_B, S_OUT, S_WS, S_DBG = 4, 8, 12, 16, 20, 24
S_RB, S_C, S_WV = 28, 29, 30
S_WROW = 32
S_XOFF = 34
S_LDSW = 42
S_T = 44
S_ROW0B = 52
S_WROW0 = 54
S_BOFF = 56
S_OUTOFF = 57
S_MASK = 58
S_VCC = 60
S_TS = 62
S_OWNB = 77
S_TW = 78
S_FAST = 76
S_XCC = 75
S_GT = 94
S_W0Q = 82
S_XPG = 86

XB = {1: 16 << 20, 2: 24 << 20}
UNIT = 32768
NUNIT = 5


def unit_of(beta):
    return {0: 0, 1: 1, 2: 2, 3: 0, 4: 1}.get(beta, (beta + 2) % 5)


def xf_reg(q, j, s):
    if j == 0:
        b = OWN + (q * 2 + s) * 4
        return f"v[{b}:{b+3}]"
    b = ((q * 7 + (j - 1)) * 2 + s) * 4
    return f"a[{b}:{b+3}]"


class G:
    def __init__(s):
        s.L = []
        s.ldsq = []
        s.vmq = []
        s.cnt = 0

    def e(s, txt):
        s.L.append("    " + txt)
        s.cnt += 1

    def label(s, name):
        s.L.append(name + ":")

    def c(s, txt):
        s.L.append("    ; " + txt)

    def lds(s, txt, tag=None):
        s.e(txt)
        s.ldsq.append(tag)

    def vm(s, txt, tag=None):
        s.e(txt)
        s.vmq.append(tag)

    def wait(s, vm=None, lds=None):
        parts = []
        if vm is not None and vm in s.vmq:
            idx = len(s.vmq) - 1 - s.vmq[::-1].index(vm)
            n = len(s.vmq) - 1 - idx
            s.vmq = s.vmq[idx + 1:]
            parts.append(f"vmcnt({min(n, 63)})")
        if lds is not None and lds in s.ldsq:
            idx = len(s.ldsq) - 1 - s.ldsq[::-1].index(lds)
            n = len(s.ldsq) - 1 - idx
            s.ldsq = s.ldsq[idx + 1:]
            parts.append(f"lgkmcnt({min(n, 15)})")
        if parts:
            s.e("s_waitcnt " + " ".join(parts))

    def wait_all(s):
        s.e("s_waitcnt vmcnt(0) lgkmcnt(0)")
        s.vmq = []
        s.ldsq = []


ORD = [
    [(0, 0), (1, 0), (0, 1), (0, 2), (0, 3), (1, 1), (1, 2), (1, 3)],
    [(0, 0), (0, 1), (1, 0), (0, 2), (0, 3), (1, 1), (1, 2), (1, 3)],
    [(0, 0), (1, 0), (0, 1), (1, 1), (0, 2), (1, 2), (0, 3), (1, 3)],
]
NBLK = 24
NT = NBLK * 32


def gen():
    g = G()
    e = g.e
    hdr = """; DCN-v2 cross network, fused 3-layer kernel (generated by gen.py)
; @launch grid=(256,1,1) block=(256,1,1) lds=163840
.amdgcn_target "amdgcn-amd-amdhsa--gfx950"
.text
.globl standalone__dcn_v2_cross__recsys_kernel
.p2align 8
.type standalone__dcn_v2_cross__recsys_kernel,@function
standalone__dcn_v2_cross__recsys_kernel:"""
    g.L.append(hdr)
    slow = []

    e("s_cmp_ge_u32 s2, 256")
    e("s_cbranch_scc1 L_end")
    e("s_load_dwordx4 s[44:47], s[0:1], 0")
    e("s_load_dwordx4 s[48:51], s[0:1], 16")
    e("s_load_dwordx4 s[64:67], s[0:1], 32")
    if OPT["CODEPF"]:
        e("s_getpc_b64 s[90:91]")
        g.label("L_pc")
        e("s_lshr_b32 s92, s2, 3")
        e("s_lshl_b32 s92, s92, 8")
        e("v_add_u32 v47, s92, v0")
        e("v_lshlrev_b32 v47, 6, v47")
        e("v_mov_b32 v48, L_codeend-L_pc-64")
        e("v_min_u32 v47, v47, v48")
        e("global_load_dword v63, v47, s[90:91]")
    e("v_lshrrev_b32 v46, 6, v0")
    e("v_and_b32 v0, 63, v0")
    e("s_and_b32 s68, s2, 7")
    e("s_lshr_b32 s69, s2, 3")
    e(f"v_readfirstlane_b32 s{S_WV}, v46")
    if OPT["MAP"] == 0:
        e(f"s_and_b32 s{S_C}, s69, 7")
        e("s_lshr_b32 s69, s69, 3")
    else:
        e(f"s_lshr_b32 s{S_C}, s69, 2")
        e("s_and_b32 s69, s69, 3")
    e("s_lshl_b32 s68, s68, 2")
    e(f"s_add_u32 s{S_RB}, s68, s69")
    e("s_waitcnt lgkmcnt(0)")
    for (S, lo, size) in ((S_X0, 44, 8 << 20), (S_W, 46, 6 << 20), (S_B, 48, 6144), (S_OUT, 50, 8 << 20),
                          (S_DBG, 64, 256), (S_WS, 66, 256 << 20)):
        e(f"s_mov_b32 s{S}, s{lo}")
        e(f"s_and_b32 s{S+1}, s{lo+1}, 0xffff")
        e(f"s_mov_b32 s{S+2}, {size}")
        e(f"s_mov_b32 s{S+3}, 0x00020000")
    e(f"s_mov_b32 s{S_MASK}, 0xffff0000")
    e("s_mov_b32 s74, 200000")
    e(f"s_lshl_b32 s{S_LDSW}, s{S_WV}, 13")
    e(f"s_lshl_b32 s68, s{S_RB}, 7")
    e(f"s_lshl_b32 s69, s{S_WV}, 5")
    e("s_add_u32 s68, s68, s69")
    e(f"s_lshl_b32 s{S_ROW0B}, s68, 11")
    e(f"s_lshl_b32 s{S_BOFF}, s{S_C}, 8")
    e(f"s_add_u32 s{S_OUTOFF}, s{S_ROW0B}, s{S_BOFF}")
    e(f"s_lshl_b32 s68, s{S_RB}, 2")
    e(f"s_add_u32 s68, s68, s{S_WV}")
    e("s_lshl_b32 s69, s68, 16")
    for j in range(8):
        e(f"s_add_u32 s70, s{S_C}, {j}")
        e("s_and_b32 s70, s70, 7")
        e("s_lshl_b32 s70, s70, 13")
        e(f"s_add_u32 s{S_XOFF+j}, s69, s70")
    for i in range(2):
        e(f"s_lshl_b32 s70, s{S_WV}, 1")
        e(f"s_add_u32 s70, s70, {i}")
        e(f"s_add_u32 s70, s70, s{S_C}")
        e("s_and_b32 s70, s70, 7")
        e("s_lshl_b32 s70, s70, 18")
        e(f"s_add_u32 s{S_WROW+i}, s70, s{S_BOFF}")
    e(f"s_lshr_b32 s71, s{S_WV}, 1")
    e(f"s_add_u32 s71, s71, s{S_C}")
    e(f"s_lshl_b32 s73, s{S_WV}, 1")
    e("s_and_b32 s73, s73, 3")
    e("s_lshl_b32 s73, s73, 16")
    e(f"s_add_u32 s73, s73, s{S_BOFF}")
    for q in range(4):
        e(f"s_add_u32 s70, s71, {2*q}")
        e("s_and_b32 s70, s70, 7")
        e("s_lshl_b32 s70, s70, 18")
        e(f"s_add_u32 s{S_W0Q+q}, s70, s73")
    for n in range(8):
        e(f"s_add_u32 s70, s{S_C}, {n}")
        e("s_and_b32 s70, s70, 7")
        e("s_lshl_b32 s70, s70, 8")
        e(f"s_add_u32 s{S_XPG+n}, s70, s{S_ROW0B}")
    e("s_lshl_b32 s72, s68, 7")
    e(f"s_lshl_b32 s73, s{S_C}, 2")
    e("s_add_u32 s73, s73, s72")
    e(f"v_lshlrev_b32 v{V_LANE16}, 4, v0")
    e(f"v_add_u32 v{V_LANE16B}, 4096, v{V_LANE16}")
    T = V_T0
    e(f"v_lshrrev_b32 v{T}, 5, v0")
    e(f"v_and_b32 v{T+1}, 31, v0")
    e(f"v_lshrrev_b32 v{T+2}, 2, v0")
    e(f"v_and_b32 v{T+2}, 3, v{T+2}")
    e(f"v_and_b32 v{T+3}, 3, v0")
    e(f"v_lshrrev_b32 v{T+4}, 4, v0")
    e(f"v_and_b32 v{T+4}, 1, v{T+4}")
    e(f"v_lshlrev_b32 v{V_FLAGST}, 5, v0")
    e(f"v_add_u32 v{V_FLAGST}, s73, v{V_FLAGST}")
    e(f"v_mov_b32 v{T+5}, 0x7ffffff0")
    e("v_cmp_gt_u32 vcc, 4, v0")
    e("s_nop 1")
    e(f"v_cndmask_b32 v{T+6}, v{T+5}, v{V_FLAGST}, vcc")
    e("v_cmp_gt_u32 vcc, 1, v0")
    e("s_nop 1")
    e(f"v_cndmask_b32 v{V_FLAGST}, v{T+5}, v{V_FLAGST}, vcc")
    e(f"v_mov_b32 v{T+7}, 0")
    g.vm(f"buffer_store_dword v{T+7}, v{T+6}, s[{S_WS}:{S_WS+3}], 0 offen sc1", "fz")
    e(f"v_and_b32 v{V_POLLOFF}, 7, v0")
    e(f"v_lshlrev_b32 v{V_POLLOFF}, 2, v{V_POLLOFF}")
    e(f"v_add_u32 v{V_POLLOFF}, s72, v{V_POLLOFF}")
    e(f"s_lshl_b32 s70, s{S_RB}, 2")
    e(f"v_mov_b32 v{V_ATOM}, s70")
    e(f"s_lshl_b32 s71, s{S_WV}, 6")
    e(f"v_or_b32 v{T+7}, s71, v0")
    e(f"v_cmp_eq_u32 vcc, 0, v{T+7}")
    e("s_nop 1")
    e(f"v_cndmask_b32 v{V_ATOM}, v{T+5}, v{V_ATOM}, vcc")
    e(f"s_getreg_b32 s{S_XCC}, hwreg(HW_REG_XCC_ID)")
    e(f"s_and_b32 s{S_XCC}, s{S_XCC}, 7")
    e(f"s_lshl_b32 s{S_XCC}, s{S_XCC}, 2")
    e(f"s_lshl_b32 s70, 1, s{S_XCC}")
    e(f"v_mov_b32 v{V_ONE}, s70")
    e(f"s_lshl_b32 s{S_XCC}, 8, s{S_XCC}")
    e(f"v_lshrrev_b32 v{T+5}, 3, v0")
    e(f"v_and_b32 v{T+6}, 7, v0")
    e(f"v_lshrrev_b32 v{T+7}, 4, v0")
    e(f"v_and_b32 v{T+7}, 1, v{T+7}")
    e(f"v_lshlrev_b32 v{T+7}, 2, v{T+7}")
    e(f"v_xor_b32 v{T+6}, v{T+6}, v{T+7}")
    e(f"v_lshlrev_b32 v{T+6}, 4, v{T+6}")
    e(f"v_lshlrev_b32 v{T+5}, 11, v{T+5}")
    e(f"v_add_u32 v{V_WD}, v{T+5}, v{T+6}")
    for i in range(1, 4):
        e(f"v_add_u32 v{V_WD+i}, {i*15360}, v{V_WD}")
    e(f"v_lshrrev_b32 v{T+5}, 1, v{T+2}")
    e(f"v_lshlrev_b32 v{T+5}, 6, v{T+5}")
    e(f"v_lshlrev_b32 v{T+6}, 5, v{T+4}")
    e(f"v_add_u32 v{T+5}, v{T+5}, v{T+6}")
    e(f"v_lshlrev_b32 v{T+6}, 3, v{T+3}")
    e(f"v_add_u32 v{T+5}, v{T+5}, v{T+6}")
    e(f"v_lshlrev_b32 v{T+6}, 7, v{T+2}")
    e(f"v_add_u32 v{T+5}, v{T+5}, v{T+6}")
    e(f"v_lshlrev_b32 v{T+6}, 10, v{T}")
    e(f"v_add_u32 v{V_TR}, v{T+5}, v{T+6}")
    e(f"v_xor_b32 v{V_TR+1}, 64, v{V_TR}")
    for b in (1, 2):
        e(f"v_add_u32 v{V_TR+2*b}, {b*65536}, v{V_TR}")
        e(f"v_add_u32 v{V_TR+2*b+1}, {b*65536}, v{V_TR+1}")
    e(f"v_lshlrev_b32 v{V_BOFF}, 1, v{T+1}")
    e(f"v_mov_b32 v{T+5}, 0x7ffffff0")
    e("v_cmp_gt_u32 vcc, 32, v0")
    e("s_nop 1")
    e(f"v_cndmask_b32 v{V_BOFF}, v{T+5}, v{V_BOFF}, vcc")
    e(f"v_mov_b32 v{T+5}, 0x3f80")
    e(f"v_cndmask_b32 v{V_BB}, 0, v{T+5}, vcc")
    for r in (V_BB+1, V_BB+2, V_BB+3, V_BA+1, V_BA+2, V_BA+3, V_BA+5, V_BA+6, V_BA+7):
        e(f"v_mov_b32 v{r}, 0")
    e(f"v_lshlrev_b32 v{V_OOFF}, 11, v{T+1}")
    e(f"v_lshlrev_b32 v{T+6}, 4, v{T}")
    e(f"v_add_u32 v{V_OOFF}, v{V_OOFF}, v{T+6}")
    e(f"v_lshrrev_b32 v{T+5}, 4, v0")
    e(f"v_and_b32 v{T+6}, 15, v0")
    e(f"v_xor_b32 v{T+6}, v{T+6}, v{T+5}")
    e(f"v_lshlrev_b32 v{T+5}, 11, v{T+5}")
    for i in range(4):
        e(f"v_xor_b32 v{T+7}, {4*i}, v{T+6}")
        e(f"v_lshlrev_b32 v{T+7}, 4, v{T+7}")
        e(f"v_add_u32 v{T+7}, v{T+7}, v{T+5}")
        e(f"v_add_u32 v{V_XD+i}, {i*(8192-1024)}, v{T+7}")
    e(f"v_and_b32 v{T+5}, 15, v{T+1}")
    e(f"v_xor_b32 v{T+6}, v{T+5}, v{T}")
    e(f"v_lshlrev_b32 v{T+6}, 4, v{T+6}")
    e(f"v_lshlrev_b32 v{T+7}, 8, v{T+1}")
    e(f"v_add_u32 v{T+7}, s{S_LDSW}, v{T+7}")
    e(f"v_add_u32 v{T+7}, {3*UNIT}, v{T+7}")
    e(f"v_add_u32 v{T+6}, v{T+6}, v{T+7}")
    for jj in range(8):
        e(f"v_xor_b32 v{V_XR+jj}, {32*jj}, v{T+6}")
    e(f"v_lshlrev_b32 v{T+5}, 4, v{T+5}")
    e(f"v_add_u32 v{V_OWR}, v{T+5}, v{T+7}")
    e(f"v_lshlrev_b32 v{T+5}, 3, v{T}")
    e(f"v_add_u32 v{V_OWR}, v{V_OWR}, v{T+5}")
    e(f"v_lshrrev_b32 v{V_TCH}, 4, v0")
    e(f"v_lshlrev_b32 v{V_TCH}, 11, v{V_TCH}")
    e(f"v_and_b32 v{T+5}, 15, v0")
    e(f"v_lshlrev_b32 v{T+5}, 7, v{T+5}")
    e(f"v_add_u32 v{V_TCH}, v{V_TCH}, v{T+5}")
    e(f"s_lshr_b32 s70, s2, 3")
    e(f"s_lshl_b32 s70, s70, 2")
    e(f"s_add_u32 s70, s70, s{S_WV}")
    e(f"s_lshl_b32 s70, s70, 14")
    e(f"s_mov_b32 s{S_TW}, s70")
    e(f"s_add_u32 s{S_TW+1}, s{S_TW}, {2<<20}")
    e(f"s_add_u32 s{S_TW+2}, s{S_TW}, {4<<20}")

    V_ST = 53
    stamp_n = [0]
    def stamp(kind=0):
        if not OPT["STAMP"]:
            return
        if (OPT["STAMP"] == 3) != (kind == 3):
            return
        if kind == 3:
            e(f"s_memrealtime s[{S_TS}:{S_TS+1}]")
        else:
            e(f"s_memtime s[{S_TS}:{S_TS+1}]")
        e("s_waitcnt lgkmcnt(0)")
        g.ldsq = []
        e(f"v_writelane_b32 v{V_ST}, s{S_TS}, {stamp_n[0]}")
        stamp_n[0] += 1
    if OPT["STAMP"]:
        e(f"v_mov_b32 v{V_ST}, 0")
    stamp()
    stamp(3)
    if OPT["TOUCH"] & 2:
        e(f"v_lshlrev_b32 v{V_T64}, 6, v0")

    m0_cur = [None]
    soff_cur = {}
    def set_m0(val):
        if m0_cur[0] != val:
            e(f"s_add_u32 m0, s{S_LDSW}, {val}")
            m0_cur[0] = val
            return True
        return False
    def set_soff(sreg, base, const):
        if soff_cur.get(sreg) != (base, const):
            e(f"s_add_u32 s{sreg}, s{base}, {const}")
            soff_cur[sreg] = (base, const)
            return True
        return False

    def w_dma(beta):
        l, b = divmod(beta, 8)
        P, q = ORD[l][b]
        unit = unit_of(beta)
        out = []
        for part in range(2):
            if l == 0:
                const = P * 128 + part * 65536
                base = S_W0Q + q
            else:
                const = l * (2 << 20) + q * 32 * 2048 + P * 128
                base = S_WROW + part
            for i in range(4):
                off = f" offset:{i*1024}" if i else ""
                def pre(part=part, base=base, const=const):
                    a = set_m0(unit*UNIT + part*4096)
                    b_ = set_soff(S_T, base, const)
                    return a and not b_
                def post(i=i, off=off):
                    g.vm(f"buffer_load_dwordx4 v{V_WD+i}, s[{S_W}:{S_W+3}], s{S_T} offen{off} lds", ("w", beta))
                out.append((pre, post))
        return out

    def x0_dma(unit, n, tag, first_wait=None):
        out = []
        for half in range(2):
            for i in range(4):
                off = f" offset:{i*1024}" if i else ""
                def pre(i=i, half=half):
                    if first_wait is not None and i == 0 and half == 0:
                        g.wait(lds=first_wait)
                    a = set_m0(unit*UNIT + half*4096)
                    b_ = set_soff(S_T+7, S_XPG+n, half*16*2048)
                    return a and not b_
                def post(i=i, off=off):
                    g.vm(f"buffer_load_dwordx4 v{V_XD+i}, s[{S_X0}:{S_X0+3}], s{S_T+7} offen{off} lds", tag)
                out.append((pre, post))
        return out

    def runv(ops):
        for pre, post in ops:
            if pre():
                e("s_nop 0")
            post()

    def x0_read_ops(unit, q, half, tag):
        ops = [lambda: g.wait(vm=tag)]
        for jj in range(8):
            j = 4 * half + jj // 2
            s_ = jj % 2
            base = unit * UNIT - 3 * UNIT
            if base >= 0:
                ops.append(lambda j=j, s_=s_, jj=jj, base=base: g.lds(
                    f"ds_read_b128 {xf_reg(q, j, s_)}, v{V_XR+jj} offset:{base}", ("x0r", tag)))
            else:
                def f(j=j, s_=s_, jj=jj, base=base):
                    e(f"v_add_u32 v{V_T0}, {base}, v{V_XR+jj}")
                    g.lds(f"ds_read_b128 {xf_reg(q, j, s_)}, v{V_T0}", ("x0r", tag))
                ops.append(f)
        return ops

    def run(ops):
        for op in ops:
            op()

    def bias_load(l, i):
        g.vm(f"buffer_load_ushort v{V_BA+4*(i%2)}, v{V_BOFF}, s[{S_B}:{S_B+3}], s{S_T+1+l} offen offset:{64*i}", ("b", l, i))

    def bias_mfma(l, i):
        g.wait(vm=("b", l, i))
        a = ACC + 16 * i
        ba = V_BA + 4 * (i % 2)
        e(f"v_mfma_f32_32x32x16_bf16 v[{a}:{a+15}], v[{ba}:{ba+3}], v[{V_BB}:{V_BB+3}], 0")

    def touch_w(l):
        for k in range(4):
            e(f"s_add_u32 s70, s{S_TW+l}, {4096*k}")
            g.vm(f"buffer_load_dword v{V_DUM+k}, v{V_T64}, s[{S_W}:{S_W+3}], s70 offen", "touch")

    def touch_slow(l):
        g.vm(f"buffer_load_dword v{V_DUM+2}, v{V_TSL}, s[{S_W}:{S_W+3}], s{S_TW+l} offen", "touch")
    if OPT["TOUCH"] & 16:
        e(f"v_lshrrev_b32 v{V_TSL}, 2, v0")
        e(f"v_lshlrev_b32 v{V_TSL}, 11, v{V_TSL}")
        e(f"v_and_b32 v{V_T0}, 2, v0")
        e(f"v_lshlrev_b32 v{V_T0}, 9, v{V_T0}")
        e(f"v_add_u32 v{V_TSL}, v{V_TSL}, v{V_T0}")
        e(f"v_and_b32 v{V_T0}, 1, v0")
        e(f"v_lshlrev_b32 v{V_T0}, 6, v{V_T0}")
        e(f"v_add_u32 v{V_TSL}, v{V_TSL}, v{V_T0}")
        e(f"v_add_u32 v{V_TSL}, 384, v{V_TSL}")
        e(f"v_mov_b32 v{V_T0}, 0x7ffffff0")
        e("v_cmp_gt_u32 vcc, 32, v0")
        e("s_nop 1")
        e(f"v_cndmask_b32 v{V_TSL}, v{V_T0}, v{V_TSL}, vcc")
        touch_slow(0)
    for l in range(3):
        e(f"s_add_u32 s{S_T+1+l}, s{S_BOFF}, {l*2048}")
    bias_load(0, 0)
    bias_load(0, 1)
    runv(w_dma(0))
    PG = {(0, 0): 3, (0, 1): 4, (1, 0): 2, (1, 1): 3, (2, 0): 4, (2, 1): 3, (3, 0): 4, (3, 1): 3}
    def ptag(q, h):
        return ("x0", q, h)
    runv(x0_dma(3, 0, ptag(0, 0)))
    stamp(3)
    def gtouch(l):
        g.vm(f"buffer_load_dword v{V_DUM}, v{V_GT}, s[{S_W}:{S_W+3}], s{S_GT+l} offen", "touch")
    if OPT["TOUCH"] & 4:
        e(f"v_lshlrev_b32 v{V_GT}, 6, v0")
        e(f"v_mov_b32 v{V_T0}, 0x7ffffff0")
        e("v_cmp_gt_u32 vcc, 32, v0")
        e(f"s_lshl_b32 s70, s2, 2")
        e(f"v_cndmask_b32 v{V_GT}, v{V_T0}, v{V_GT}, vcc")
        e(f"s_add_u32 s70, s70, s{S_WV}")
        e(f"s_lshl_b32 s{S_GT}, s70, 11")
        e(f"s_add_u32 s{S_GT+1}, s{S_GT}, {2<<20}")
        e(f"s_add_u32 s{S_GT+2}, s{S_GT}, {4<<20}")
        for l in range(3):
            if OPT["GT"+str(l)] < 0:
                gtouch(l)
    if OPT["TOUCH"] & 8:
        e(f"s_lshl_b32 s70, s{S_C}, 2")
        e(f"s_add_u32 s70, s70, s{S_WV}")
        e(f"s_lshl_b32 s70, s70, 13")
        e(f"s_lshl_b32 s71, s{S_RB}, 18")
        e(f"s_add_u32 s70, s70, s71")
        g.vm(f"buffer_load_dword v{V_DUM+2}, v{V_TCH}, s[{S_X0}:{S_X0+3}], s70 offen", "touch")
    if OPT["TOUCH"] & 1:
        e(f"s_lshl_b32 s70, s{S_C}, 2")
        e(f"s_add_u32 s70, s70, s{S_WV}")
        e(f"s_lshl_b32 s70, s70, 13")
        e(f"s_lshl_b32 s71, s{S_RB}, 18")
        e(f"s_add_u32 s70, s70, s71")
        g.vm(f"buffer_load_dword v{V_DUM+2}, v{V_TCH}, s[{S_X0}:{S_X0+3}], s70 offen", "touch")
        touch_w(0)
    runv(x0_dma(4, 1, ptag(0, 1)))
    runv(x0_dma(2, 2, ptag(1, 0)))
    runv(w_dma(1))
    if OPT["WARM"]:
        e(f"s_add_u32 s70, s{S_XOFF}, {XB[1]}")
        g.vm(f"buffer_load_dword v{V_DUM+3}, v{V_LANE16}, s[{S_WS}:{S_WS+3}], s70 offen", "touch")
        e(f"s_add_u32 s70, s{S_XOFF}, {XB[2]}")
        g.vm(f"buffer_load_dword v{V_DUM+3}, v{V_LANE16}, s[{S_WS}:{S_WS+3}], s70 offen", "touch")
        g.vm(f"buffer_load_dword v{V_DUM+3}, v{V_LANE16}, s[{S_OUT}:{S_OUT+3}], s{S_OUTOFF} offen", "touch")
    stamp()
    stamp(3)
    g.wait(vm=("w", 0))
    stamp(3)
    g.wait(vm=ptag(0, 0))
    stamp(3)
    run(x0_read_ops(3, 0, 0, ptag(0, 0)))
    for pc in range(16):
        i, gg = divmod(pc, 4)
        r = X0F + i * 16 + gg * 4
        e(f"v_xor_b32 v{V_T0}, {16*pc}, v{V_OWR}")
        g.lds(f"ds_read_b64 v[{r+2}:{r+3}], v{V_T0}", ("own", pc))
    for pc in range(16):
        i, gg = divmod(pc, 4)
        r = X0F + i * 16 + gg * 4
        g.wait(lds=("own", pc))
        if pc == 15:
            runv(x0_dma(3, 3, ptag(1, 1)))
        e(f"v_lshlrev_b32 v{r}, 16, v{r+2}")
        e(f"v_and_b32 v{r+1}, s{S_MASK}, v{r+2}")
        e(f"v_lshlrev_b32 v{r+2}, 16, v{r+3}")
        e(f"v_and_b32 v{r+3}, s{S_MASK}, v{r+3}")
    stamp()
    stamp(3)
    e("s_barrier")
    stamp(3)
    g.vm(f"buffer_atomic_add v{V_ONE}, v{V_ATOM}, s[{S_DBG}:{S_DBG+3}], 0 offen sc1", "atom")

    fill = defaultdict(list)
    fill2 = defaultdict(list)
    used = defaultdict(int)
    CAP = OPT["CAP"]
    for t in range(NT + 200):
        used[t] = 2 + (1 if t % 2 == 0 else 0) if t < NT else 0
        if t % OPT["R"] == 1 % OPT["R"] and t < NT - 64:
            used[t] += 2

    def at(t, op, cost=1):
        fill[t].append(op)
        used[t] += cost

    def chain(t0, ops, cap=None):
        t = t0
        c = cap if cap is not None else CAP
        for op in ops:
            while used[t] >= c:
                t += 1
            at(t, op)
        return t + 1

    vmq = defaultdict(list)
    def vsched(cls, earliest, deadline, ops):
        for n, (pre, post) in enumerate(ops):
            dl = deadline[n] if isinstance(deadline, (list, tuple)) else deadline
            vmq[cls].append((earliest, dl, pre, post))

    mf = [None] * NT
    first_use = {}
    last_use = {}
    done = {}
    start = {}
    seen = set()
    use_t = {}
    for beta in range(NBLK):
        l, b = divmod(beta, 8)
        P, q = ORD[l][b]
        firstq = (l, q) not in seen
        seen.add((l, q))
        lastP = all(ORD[l][bb][0] != P for bb in range(b + 1, 8))
        inter = firstq and (not lastP or OPT["INTER_LAST"])
        if inter:
            seq = [(ns, j, s_) for j in range(8) for ns in range(2) for s_ in range(2)]
        else:
            seq = [(ns, j, s_) for ns in range(2) for j in range(8) for s_ in range(2)]
        for n, (ns, j, s_) in enumerate(seq):
            i = 2 * P + ns
            t = beta * 32 + n
            mf[t] = (l, beta, P, q, ns, i, j, s_)
            first_use.setdefault((l, q), t)
            use_t.setdefault((l, q, j, s_), t)
            last_use[(l, q)] = t
            done[(l, i)] = t
            start.setdefault((l, i), t)
    LAT = OPT["LAT"]
    for l in range(3):
        for i in range(4):
            ts = start[(l, i)]
            fill[ts].insert(0, lambda l=l, i=i: bias_mfma(l, i))
            used[ts] += 3
            if not (l == 0 and i < 2):
                pl, pi = (l, i - 2) if i >= 2 else (l - 1, i + 2)
                tl = max(start[(pl, pi)] + 2, ts - 48)
                at(tl, lambda l=l, i=i: bias_load(l, i))
    BPOS = OPT["BPOS"]
    for beta in range(NBLK):
        t = beta * 32 + BPOS
        if beta + 1 < NBLK:
            at(t, lambda beta=beta: g.wait(vm=("w", beta + 1)))
            at(t, lambda: e("s_barrier"))
        if beta <= 3:
            nxt = [beta + 2]
        elif beta == 4:
            nxt = [6, 7, 8]
        else:
            nxt = [beta + 4]
        for nb in nxt:
            if nb < NBLK and not OPT["NOW"]:
                vsched("w", t + 1, 32 * (nb - 1) + BPOS - OPT["LATW"], w_dma(nb))
    def stage(t, q, h, nxt, tnext=None):
        tag = ptag(q, h)
        u = PG[(q, h)]
        t = chain(t, x0_read_ops(u, q, h, tag))
        if nxt is not None:
            n = 2 * nxt[0] + nxt[1]
            vsched("x0", t, tnext - LAT, x0_dma(u, n, ptag(*nxt), first_wait=("x0r", tag)))
    ST = {(0, 1): 2, (1, 0): 8, (1, 1): 34, (2, 0): 56, (2, 1): 90, (3, 0): 112, (3, 1): 132}
    stage(ST[(0, 1)], 0, 1, (2, 0), ST[(2, 0)])
    stage(ST[(1, 0)], 1, 0, None)
    stage(ST[(1, 1)], 1, 1, (2, 1), ST[(2, 1)])
    stage(ST[(2, 0)], 2, 0, (3, 0), ST[(3, 0)])
    stage(ST[(2, 1)], 2, 1, (3, 1), ST[(3, 1)])
    stage(ST[(3, 0)], 3, 0, None)
    stage(ST[(3, 1)], 3, 1, None)
    if OPT["TOUCH"] & 4:
        for l in range(3):
            if OPT["GT"+str(l)] >= 0:
                at(OPT["GT"+str(l)], lambda l=l: gtouch(l))
    if OPT["TOUCH"] & 16:
        at(OPT["TS1"], lambda: touch_slow(1))
        at(OPT["TS2"], lambda: touch_slow(2))
    if OPT["TOUCH"] & 2:
        at(OPT["TW1"], lambda: touch_w(1), 8)
        at(OPT["TW2"], lambda: touch_w(2), 8)
    def switch_tr():
        e(f"v_lshrrev_b32 v{V_T0}, 5, v0")
        e(f"v_lshlrev_b32 v{V_T0}, 9, v{V_T0}")
        for k in range(6):
            e(f"v_sub_u32 v{V_TR+k}, v{V_TR+k}, v{V_T0}")
    switch_at = 256 - D

    def epi_ops(l, i, dst):
        ops = []
        for d in range(8):
            a0 = ACC + i * 16 + 2 * d
            x0 = X0F + i * 16 + 2 * d
            src = OWN + i * 8 + d
            t0 = V_ET + (d % 4) * 2
            if l == 0:
                ops.append(lambda a0=a0, x0=x0, t0=t0: e(f"v_fma_f32 v{t0}, v{x0}, v{a0}, v{x0}"))
                ops.append(lambda a0=a0, x0=x0, t0=t0: e(f"v_fma_f32 v{t0+1}, v{x0+1}, v{a0+1}, v{x0+1}"))
            else:
                ops.append(lambda src=src, t0=t0: e(f"v_lshlrev_b32 v{t0}, 16, v{src}"))
                ops.append(lambda src=src, t0=t0: e(f"v_and_b32 v{t0+1}, s{S_MASK}, v{src}"))
                ops.append(lambda a0=a0, x0=x0, t0=t0: e(f"v_fma_f32 v{t0}, v{x0}, v{a0}, v{t0}"))
                ops.append(lambda a0=a0, x0=x0, t0=t0: e(f"v_fma_f32 v{t0+1}, v{x0+1}, v{a0+1}, v{t0+1}"))
            ops.append(lambda t0=t0, d=d: e(f"v_cvt_pk_bf16_f32 v{dst+d}, v{t0}, v{t0+1}"))
        return ops

    def ready_issue():
        e(f"s_lshl_b32 s{S_T+5}, s{S_RB}, 2")
        e(f"v_mov_b32 v{V_RDY+1}, s{S_T+5}")
        g.vm(f"buffer_load_dword v{V_RDY}, v{V_RDY+1}, s[{S_DBG}:{S_DBG+3}], 0 offen sc1", "rdy")

    def ready_check():
        g.wait(vm="rdy")
        g.label("L_rdy")
        e(f"v_readfirstlane_b32 s70, v{V_RDY}")
        e("s_nop 3")
        e("s_lshr_b32 s71, s70, 4")
        e("s_and_b32 s71, s71, 0x0f0f0f0f")
        e("s_and_b32 s72, s70, 0x0f0f0f0f")
        e("s_add_u32 s71, s71, s72")
        e("s_mul_i32 s71, s71, 0x01010101")
        e("s_lshr_b32 s71, s71, 24")
        e("s_cmp_lg_u32 s71, 8")
        e("s_cbranch_scc1 L_rdy_slow")
        g.label("L_rdy_out")
        e(f"s_cmp_eq_u32 s70, s{S_XCC}")
        e(f"s_cselect_b32 s{S_FAST}, {OPT['FAST']}, 0")
        slow.append(f"""L_rdy_slow:
    s_sub_u32 s74, s74, 1
    s_cbranch_scc1 L_rdy_out
    buffer_load_dword v{V_RDY}, v{V_RDY+1}, s[{S_DBG}:{S_DBG+3}], 0 offen sc1
    s_waitcnt vmcnt(0)
    s_branch L_rdy""")

    flag_t = {}
    prev_epi_end = 0
    for l in range(3):
        for i in sorted(range(4), key=lambda i: done[(l, i)]):
            tc = max(done[(l, i)] + 4, prev_epi_end)
            own_last = max(t for t in range(l * 256, l * 256 + 256) if mf[t][3] == i and mf[t][6] == 0)
            direct = own_last < tc
            TM = TMPN if i % 2 == 0 else TMPN2
            dst = OWN + i * 8 if direct else TM
            tend = chain(tc, epi_ops(l, i, dst), cap=CAP + OPT["EPI_PRI"])
            prev_epi_end = tend
            if l < 2:
                assert tend <= start[(l + 1, i)], (l, i, tend, start[(l + 1, i)])
                assert tend <= use_t[(l + 1, i, 0, 0)], (l, i, tend)
            if l < 2:
                voff = V_LANE16 if i < 2 else V_LANE16B
                def st(dst=dst, voff=voff, l=l, i=i):
                    uid = f"{l}_{i}"
                    stamp(3)
                    set_soff(S_T+4, S_XOFF, XB[l+1])
                    e(f"s_cmp_lg_u32 s{S_FAST}, 0")
                    e(f"s_cbranch_scc1 L_sf{uid}")
                    for s_ in range(2):
                        r = dst + 4 * s_
                        off = (i % 2) * 2048 + s_ * 1024
                        e(f"buffer_store_dwordx4 v[{r}:{r+3}], v{voff}, s[{S_WS}:{S_WS+3}], s{S_T+4} offen offset:{off} sc1")
                    e(f"s_branch L_sj{uid}")
                    g.label(f"L_sf{uid}")
                    for s_ in range(2):
                        r = dst + 4 * s_
                        off = (i % 2) * 2048 + s_ * 1024
                        g.vm(f"buffer_store_dwordx4 v[{r}:{r+3}], v{voff}, s[{S_WS}:{S_WS+3}], s{S_T+4} offen offset:{off}", ("st", l, i))
                    g.label(f"L_sj{uid}")
                at(tend, st, 5)
                tf = tend + OPT["FLAG_DELAY"]
                flag_t[(l, i)] = tf
                def fl(l=l, i=i):
                    uid = f"{l}_{i}"
                    if OPT["NOPOLL"]:
                        return
                    stamp(3)
                    g.wait(vm=("st", l, i))
                    stamp(3)
                    e(f"v_mov_b32 v{V_T0+1}, {l+1}")
                    e(f"s_cmp_lg_u32 s{S_FAST}, 0")
                    e(f"s_cbranch_scc1 L_ff{uid}")
                    e(f"buffer_store_dword v{V_T0+1}, v{V_FLAGST}, s[{S_WS}:{S_WS+3}], 0 offen offset:{32*i} sc1")
                    e(f"s_branch L_fj{uid}")
                    g.label(f"L_ff{uid}")
                    g.vm(f"buffer_store_dword v{V_T0+1}, v{V_FLAGST}, s[{S_WS}:{S_WS+3}], 0 offen offset:{32*i}", "fl")
                    g.label(f"L_fj{uid}")
                at(tf, fl, 5)
                if l == 0 and tc == min(done[(0, k)] for k in range(4)) + 4:
                    at(tc - 50, ready_issue, 3)
                    at(tc - 4, ready_check, 12)
                if not direct:
                    tm = max(own_last + 1, tend + 1)
                    chain(tm, [lambda d=d, i=i, TM=TM: e(f"v_mov_b32 v{OWN+i*8+d}, v{TM+d}") for d in range(8)])
            else:
                for s_ in range(2):
                    r = dst + 4 * s_
                    at(tend + 1, lambda r=r: (e("s_nop 1"), e(f"v_permlane32_swap_b32 v{r}, v{r+2}"), e(f"v_permlane32_swap_b32 v{r+1}, v{r+3}")), 3)
                    at(tend + 2, lambda r=r, s_=s_, i=i: g.vm(
                        f"buffer_store_dwordx4 v[{r}:{r+3}], v{V_OOFF}, s[{S_OUT}:{S_OUT+3}], s{S_OUTOFF} offen offset:{64*i+32*s_}", "out"))
    pid = 0
    for l in (1, 2):
        for q in range(4):
            tfu = first_use[(l, q)]
            tfree = last_use[(l - 1, q)] + 1
            tchk = max(tfu - OPT["XLEAD"], tfree, flag_t[(l - 1, q)] + OPT["FLAG_VIS"] + OPT["POLL_CHK"])
            tp = tchk - OPT["POLL_CHK"]
            pid += 1

            def poll_issue(q=q, pid=pid):
                g.vm(f"buffer_load_dword v{V_POLL}, v{V_POLLOFF}, s[{S_WS}:{S_WS+3}], 0 offen offset:{32*q} sc1", ("poll", pid))

            def poll_check(l=l, q=q, pid=pid):
                if OPT["NOPOLL"]:
                    return
                stamp(3)
                g.wait(vm=("poll", pid))
                stamp(3)
                e(f"v_cmp_gt_u32 s[{S_VCC}:{S_VCC+1}], {l}, v{V_POLL}")
                e("s_nop 3")
                e(f"s_cmp_lg_u64 s[{S_VCC}:{S_VCC+1}], 0")
                e(f"s_cbranch_scc1 L_slow{pid}")
                g.label(f"L_back{pid}")
                stamp(3)
                slow.append(f"""L_slow{pid}:
    buffer_load_dword v{V_POLL}, v{V_POLLOFF}, s[{S_WS}:{S_WS+3}], 0 offen offset:{32*q} sc1
    s_waitcnt vmcnt(0)
    v_cmp_gt_u32 s[{S_VCC}:{S_VCC+1}], {l}, v{V_POLL}
    s_sub_u32 s74, s74, 1
    s_cbranch_scc1 L_back{pid}
    s_nop 1
    s_cmp_lg_u64 s[{S_VCC}:{S_VCC+1}], 0
    s_cbranch_scc1 L_slow{pid}
    s_branch L_back{pid}""")
            at(tp, poll_issue)
            at(tchk, poll_check, 5)
            ops = []
            dls = []
            for j in range(1, 8):
                for s_ in range(2):
                    voff = V_LANE16 if q < 2 else V_LANE16B
                    off = (q % 2) * 2048 + s_ * 1024
                    def pre(l=l, j=j, s_=s_):
                        set_soff(S_T+6, S_XOFF+j, XB[l])
                        return False
                    def post(l=l, q=q, j=j, s_=s_, voff=voff, off=off):
                        g.vm(f"buffer_load_dwordx4 {xf_reg(q, j, s_)}, v{voff}, s[{S_WS}:{S_WS+3}], s{S_T+6} offen offset:{off} sc1",
                             ("x", l, q, j))
                    ops.append((pre, post))
                    dls.append(use_t[(l, q, j, s_)] - LAT)
            if not OPT["NOX"]:
                vsched("x", tchk + 1, dls, ops)

    heads = {c: 0 for c in vmq}
    last = -100
    late = []
    t = 0
    while any(heads[c] < len(vmq[c]) for c in vmq):
        cands = [(vmq[c][heads[c]][1], c) for c in vmq if heads[c] < len(vmq[c]) and vmq[c][heads[c]][0] <= t]
        if cands:
            dl, c = min(cands)
            if (t % OPT["R"] == 1 % OPT["R"]) or (dl <= t and t - last >= 1):
                ea, dl, pre, post = vmq[c][heads[c]]
                fill[t].append(pre)
                fill2[t].append(post)
                heads[c] += 1
                last = t
                if t > dl:
                    late.append((c, t, dl))
        t += 1
    if late:
        sys.stderr.write(f"late vm ops: {len(late)}  worst {max(x[1]-x[2] for x in late)}  first {late[:3]}\n")

    def wf_regs(t):
        return WF + (t % NWF) * 4

    def issue_reads(t):
        l, beta, P, q, ns, i, j, s_ = mf[t]
        unit = unit_of(beta)
        base = unit * UNIT
        vb = V_TR + 2 * (base >> 16) + ns
        b = wf_regs(t)
        for tt in range(2):
            if l == 0:
                off = (32 * j + 16 * s_ + 4 * tt) * 128
            else:
                off = (32 * j + 16 * s_ + 8 * tt) * 128
            off += base & 0xffff
            g.lds(f"ds_read_b64_tr_b16 v[{b+2*tt}:{b+2*tt+1}], v{vb} offset:{off}", ("wf", t))

    for t in range(D):
        issue_reads(t)
    for t in range(NT):
        if OPT["STAMP"] == 1 and t % 32 == 0:
            stamp()
        if OPT["STAMP"] == 3 and t % 32 == 0 and t < 190:
            stamp(3)
        if OPT["STAMP"] == 2 and OPT["ST0"] <= t < OPT["ST0"] + 56 * OPT["STEP"] and (t - OPT["ST0"]) % OPT["STEP"] == 0:
            stamp()
        for op in fill.get(t, []):
            op()
        if t == switch_at:
            switch_tr()
        if t + D < NT:
            issue_reads(t + D)
        for op in fill2.get(t, []):
            op()
        l, beta, P, q, ns, i, j, s_ = mf[t]
        vmtag = ("x", l, q, j) if (l > 0 and j > 0) else None
        ldtag = ("wf", t + 1) if (t % 2 == 0 and t + 1 < NT) else ("wf", t)
        g.wait(vm=vmtag, lds=ldtag)
        b = wf_regs(t)
        a = ACC + i * 16
        e(f"v_mfma_f32_32x32x16_bf16 v[{a}:{a+15}], v[{b}:{b+3}], {xf_reg(q, j, s_)}, v[{a}:{a+15}]")
    e("s_nop 15")
    for t in range(NT, NT + 200):
        if t in fill:
            for op in fill[t]:
                op()
    extra = [t for t in fill if t >= NT + 200]
    assert not extra, extra
    stamp()
    stamp(3)
    e("s_waitcnt vmcnt(0)")
    stamp()
    if OPT["STAMP"]:
        e(f"s_lshl_b32 s70, s2, 2")
        e(f"s_add_u32 s70, s70, s{S_WV}")
        e(f"s_lshl_b32 s70, s70, 8")
        e(f"s_add_u32 s70, s70, {1<<20}")
        e(f"v_lshlrev_b32 v{V_T0}, 2, v0")
        e(f"v_writelane_b32 v{V_ST}, s74, 63")
        e(f"v_writelane_b32 v{V_ST}, s{S_FAST}, 62")
        e(f"buffer_store_dword v{V_ST}, v{V_T0}, s[{S_WS}:{S_WS+3}], s70 offen")
        e("s_waitcnt vmcnt(0)")
    g.label("L_end")
    e("s_endpgm")
    for sl in slow:
        g.L.append(sl)
    g.label("L_codeend")
    g.L.append(""".section .rodata,"a"
.p2align 6
.amdhsa_kernel standalone__dcn_v2_cross__recsys_kernel
  .amdhsa_next_free_vgpr 512
  .amdhsa_next_free_sgpr 102
  .amdhsa_accum_offset 256
  .amdhsa_group_segment_fixed_size 0
  .amdhsa_kernarg_size 48
  .amdhsa_user_sgpr_count 2
  .amdhsa_user_sgpr_kernarg_segment_ptr 1
  .amdhsa_system_sgpr_workgroup_id_x 1
.end_amdhsa_kernel""")
    return "\n".join(g.L) + "\n"


if __name__ == "__main__":
    out = sys.argv[1] if len(sys.argv) > 1 else "standalone__dcn_v2_cross__recsys.s"
    open(out, "w").write(gen())
```

```python
import sys
from collections import defaultdict

OPT = dict(
    D=4,
    BPOS=18,
    INTER_LAST=1,
    CAP=5,
    OUTF=0,
    INSTR=1,
    EPI_LAST=2,
    GT0=-1,
    GT1=8,
    GT2=100,
    TS1=140,
    TS2=396,
    CODEPF=0,
    NOPOLL=0,
    NOX=0,
    NOW=0,
    LATW=52,
    MAP=0,
    WARM=0,
    EPI_PRI=1,
    XLEAD=26,
    LAT=22,
    R=2,
    POLL_CHK=16,
    FLAG_DELAY=16,
    STAMP=0,
    TOUCH=20,
    TW1=64,
    TW2=300,
    FLAG_VIS=6,
    FAST=1,
    ST0=192,
    STEP=2,
)
for a in sys.argv[2:]:
    k, v = a.split("=")
    OPT[k] = int(v)

D = OPT["D"]
NWF = D + 2

ACC = 64
X0F = 128
OWN = 192
WF = 224
TMPN = 248
TMPN2 = 34
V_LANE16 = 1
V_LANE16B = 2
V_TR = 3
V_WD = 9
V_FLAGST = 13
V_POLLOFF = 14
V_POLL = 15
V_BA = 16
V_BB = 56
V_DUM = 60
V_BOFF = 24
V_OOFF = 25
V_ET = 26
V_XR = 34
V_XD = 42
V_T0 = 46
V_ATOM = 54
V_RDY = 49
V_GT = 48
V_FZ = 26
V_T64 = 48
V_TSL = 51
V_ONE = 55
V_OWR = 52
V_TCH = 51

S_X0, S_W, S_B, S_OUT, S_WS, S_DBG = 4, 8, 12, 16, 20, 24
S_RB, S_C, S_WV = 28, 29, 30
S_WROW = 32
S_XOFF = 34
S_LDSW = 42
S_T = 44
S_ROW0B = 52
S_WROW0 = 54
S_BOFF = 56
S_OUTOFF = 57
S_MASK = 58
S_VCC = 60
S_TS = 62
S_OWNB = 77
S_TW = 78
S_FAST = 76
S_XCC = 75
S_GT = 94
S_W0Q = 82
S_XPG = 86

XB = {1: 16 << 20, 2: 24 << 20}
OUTF = {0: "", 1: " sc1", 2: " nt", 3: " sc0 sc1"}[OPT["OUTF"]]
UNIT = 32768
NUNIT = 5


def unit_of(beta):
    return {0: 0, 1: 1, 2: 2, 3: 0, 4: 1}.get(beta, (beta + 2) % 5)


def xf_reg(q, j, s):
    if j == 0:
        b = OWN + (q * 2 + s) * 4
        return f"v[{b}:{b+3}]"
    b = ((q * 7 + (j - 1)) * 2 + s) * 4
    return f"a[{b}:{b+3}]"


class G:
    def __init__(s):
        s.L = []
        s.ldsq = []
        s.vmq = []
        s.cnt = 0

    def e(s, txt):
        s.L.append("    " + txt)
        s.cnt += 1

    def label(s, name):
        s.L.append(name + ":")

    def c(s, txt):
        s.L.append("    ; " + txt)

    def lds(s, txt, tag=None):
        s.e(txt)
        s.ldsq.append(tag)

    def vm(s, txt, tag=None):
        s.e(txt)
        s.vmq.append(tag)

    def wait(s, vm=None, lds=None):
        parts = []
        if vm is not None and vm in s.vmq:
            idx = len(s.vmq) - 1 - s.vmq[::-1].index(vm)
            n = len(s.vmq) - 1 - idx
            s.vmq = s.vmq[idx + 1:]
            parts.append(f"vmcnt({min(n, 63)})")
        if lds is not None and lds in s.ldsq:
            idx = len(s.ldsq) - 1 - s.ldsq[::-1].index(lds)
            n = len(s.ldsq) - 1 - idx
            s.ldsq = s.ldsq[idx + 1:]
            parts.append(f"lgkmcnt({min(n, 15)})")
        if parts:
            s.e("s_waitcnt " + " ".join(parts))

    def wait_all(s):
        s.e("s_waitcnt vmcnt(0) lgkmcnt(0)")
        s.vmq = []
        s.ldsq = []


ORD = [
    [(0, 0), (1, 0), (0, 1), (0, 2), (0, 3), (1, 1), (1, 2), (1, 3)],
    [(0, 0), (0, 1), (1, 0), (0, 2), (0, 3), (1, 1), (1, 2), (1, 3)],
    [(0, 0), (1, 0), (0, 1), (1, 1), (0, 2), (1, 2), (0, 3), (1, 3)],
]
NBLK = 24
NT = NBLK * 32


def gen():
    g = G()
    e = g.e
    hdr = """; DCN-v2 cross network, fused 3-layer kernel (generated by gen.py)
; @launch grid=(256,1,1) block=(256,1,1) lds=163840
.amdgcn_target "amdgcn-amd-amdhsa--gfx950"
.text
.globl standalone__dcn_v2_cross__recsys_kernel
.p2align 8
.type standalone__dcn_v2_cross__recsys_kernel,@function
standalone__dcn_v2_cross__recsys_kernel:"""
    g.L.append(hdr)
    slow = []

    e("s_cmp_ge_u32 s2, 256")
    e("s_cbranch_scc1 L_end")
    e("s_load_dwordx4 s[44:47], s[0:1], 0")
    e("s_load_dwordx4 s[48:51], s[0:1], 16")
    e("s_load_dwordx4 s[64:67], s[0:1], 32")
    if OPT["CODEPF"]:
        e("s_getpc_b64 s[90:91]")
        g.label("L_pc")
        e("s_lshr_b32 s92, s2, 3")
        e("s_lshl_b32 s92, s92, 8")
        e("v_add_u32 v47, s92, v0")
        e("v_lshlrev_b32 v47, 6, v47")
        e("v_mov_b32 v48, L_codeend-L_pc-64")
        e("v_min_u32 v47, v47, v48")
        e("global_load_dword v63, v47, s[90:91]")
    e("v_lshrrev_b32 v46, 6, v0")
    e("v_and_b32 v0, 63, v0")
    e("s_and_b32 s68, s2, 7")
    e("s_lshr_b32 s69, s2, 3")
    e(f"v_readfirstlane_b32 s{S_WV}, v46")
    if OPT["MAP"] == 0:
        e(f"s_and_b32 s{S_C}, s69, 7")
        e("s_lshr_b32 s69, s69, 3")
    else:
        e(f"s_lshr_b32 s{S_C}, s69, 2")
        e("s_and_b32 s69, s69, 3")
    e("s_lshl_b32 s68, s68, 2")
    e(f"s_add_u32 s{S_RB}, s68, s69")
    e(f"s_mov_b32 s{S_MASK}, 0xffff0000")
    e("s_mov_b32 s74, 200000")
    e(f"s_lshl_b32 s{S_LDSW}, s{S_WV}, 13")
    e(f"s_lshl_b32 s68, s{S_RB}, 7")
    e(f"s_lshl_b32 s69, s{S_WV}, 5")
    e("s_add_u32 s68, s68, s69")
    e(f"s_lshl_b32 s{S_ROW0B}, s68, 11")
    e(f"s_lshl_b32 s{S_BOFF}, s{S_C}, 8")
    e(f"s_add_u32 s{S_OUTOFF}, s{S_ROW0B}, s{S_BOFF}")
    e(f"s_lshl_b32 s68, s{S_RB}, 2")
    e(f"s_add_u32 s68, s68, s{S_WV}")
    e("s_lshl_b32 s69, s68, 16")
    for j in range(8):
        e(f"s_add_u32 s70, s{S_C}, {j}")
        e("s_and_b32 s70, s70, 7")
        e("s_lshl_b32 s70, s70, 13")
        e(f"s_add_u32 s{S_XOFF+j}, s69, s70")
    for i in range(2):
        e(f"s_lshl_b32 s70, s{S_WV}, 1")
        e(f"s_add_u32 s70, s70, {i}")
        e(f"s_add_u32 s70, s70, s{S_C}")
        e("s_and_b32 s70, s70, 7")
        e("s_lshl_b32 s70, s70, 18")
        e(f"s_add_u32 s{S_WROW+i}, s70, s{S_BOFF}")
    e(f"s_lshr_b32 s71, s{S_WV}, 1")
    e(f"s_add_u32 s71, s71, s{S_C}")
    e(f"s_lshl_b32 s73, s{S_WV}, 1")
    e("s_and_b32 s73, s73, 3")
    e("s_lshl_b32 s73, s73, 16")
    e(f"s_add_u32 s73, s73, s{S_BOFF}")
    for q in range(4):
        e(f"s_add_u32 s70, s71, {2*q}")
        e("s_and_b32 s70, s70, 7")
        e("s_lshl_b32 s70, s70, 18")
        e(f"s_add_u32 s{S_W0Q+q}, s70, s73")
    for n in range(8):
        e(f"s_add_u32 s70, s{S_C}, {n}")
        e("s_and_b32 s70, s70, 7")
        e("s_lshl_b32 s70, s70, 8")
        e(f"s_add_u32 s{S_XPG+n}, s70, s{S_ROW0B}")
    e("s_lshl_b32 s72, s68, 7")
    e(f"s_lshl_b32 s73, s{S_C}, 2")
    e("s_add_u32 s73, s73, s72")
    e(f"v_lshlrev_b32 v{V_LANE16}, 4, v0")
    e(f"v_add_u32 v{V_LANE16B}, 4096, v{V_LANE16}")
    T = V_T0
    e(f"v_lshrrev_b32 v{T}, 5, v0")
    e(f"v_and_b32 v{T+1}, 31, v0")
    e(f"v_lshrrev_b32 v{T+2}, 2, v0")
    e(f"v_and_b32 v{T+2}, 3, v{T+2}")
    e(f"v_and_b32 v{T+3}, 3, v0")
    e(f"v_lshrrev_b32 v{T+4}, 4, v0")
    e(f"v_and_b32 v{T+4}, 1, v{T+4}")
    e(f"v_lshlrev_b32 v{V_FLAGST}, 5, v0")
    e(f"v_add_u32 v{V_FLAGST}, s73, v{V_FLAGST}")
    e(f"v_mov_b32 v{T+5}, 0x7ffffff0")
    e("v_cmp_gt_u32 vcc, 4, v0")
    e("s_nop 1")
    e(f"v_cndmask_b32 v{T+6}, v{T+5}, v{V_FLAGST}, vcc")
    e("v_cmp_gt_u32 vcc, 1, v0")
    e("s_nop 1")
    e(f"v_cndmask_b32 v{V_FLAGST}, v{T+5}, v{V_FLAGST}, vcc")
    e(f"v_mov_b32 v{V_FZ}, v{T+6}")
    e(f"v_and_b32 v{V_POLLOFF}, 7, v0")
    e(f"v_lshlrev_b32 v{V_POLLOFF}, 2, v{V_POLLOFF}")
    e(f"v_add_u32 v{V_POLLOFF}, s72, v{V_POLLOFF}")
    e(f"s_lshl_b32 s70, s{S_RB}, 2")
    e(f"v_mov_b32 v{V_ATOM}, s70")
    e(f"s_lshl_b32 s71, s{S_WV}, 6")
    e(f"v_or_b32 v{T+7}, s71, v0")
    e(f"v_cmp_eq_u32 vcc, 0, v{T+7}")
    e("s_nop 1")
    e(f"v_cndmask_b32 v{V_ATOM}, v{T+5}, v{V_ATOM}, vcc")
    e(f"s_getreg_b32 s{S_XCC}, hwreg(HW_REG_XCC_ID)")
    e(f"s_and_b32 s{S_XCC}, s{S_XCC}, 7")
    e(f"s_lshl_b32 s{S_XCC}, s{S_XCC}, 2")
    e(f"s_lshl_b32 s70, 1, s{S_XCC}")
    e(f"v_mov_b32 v{V_ONE}, s70")
    e(f"s_lshl_b32 s{S_XCC}, 8, s{S_XCC}")
    e(f"v_lshrrev_b32 v{T+5}, 3, v0")
    e(f"v_and_b32 v{T+6}, 7, v0")
    e(f"v_lshrrev_b32 v{T+7}, 4, v0")
    e(f"v_and_b32 v{T+7}, 1, v{T+7}")
    e(f"v_lshlrev_b32 v{T+7}, 2, v{T+7}")
    e(f"v_xor_b32 v{T+6}, v{T+6}, v{T+7}")
    e(f"v_lshlrev_b32 v{T+6}, 4, v{T+6}")
    e(f"v_lshlrev_b32 v{T+5}, 11, v{T+5}")
    e(f"v_add_u32 v{V_WD}, v{T+5}, v{T+6}")
    for i in range(1, 4):
        e(f"v_add_u32 v{V_WD+i}, {i*15360}, v{V_WD}")
    e(f"v_lshrrev_b32 v{T+5}, 1, v{T+2}")
    e(f"v_lshlrev_b32 v{T+5}, 6, v{T+5}")
    e(f"v_lshlrev_b32 v{T+6}, 5, v{T+4}")
    e(f"v_add_u32 v{T+5}, v{T+5}, v{T+6}")
    e(f"v_lshlrev_b32 v{T+6}, 3, v{T+3}")
    e(f"v_add_u32 v{T+5}, v{T+5}, v{T+6}")
    e(f"v_lshlrev_b32 v{T+6}, 7, v{T+2}")
    e(f"v_add_u32 v{T+5}, v{T+5}, v{T+6}")
    e(f"v_lshlrev_b32 v{T+6}, 10, v{T}")
    e(f"v_add_u32 v{V_TR}, v{T+5}, v{T+6}")
    e(f"v_xor_b32 v{V_TR+1}, 64, v{V_TR}")
    for b in (1, 2):
        e(f"v_add_u32 v{V_TR+2*b}, {b*65536}, v{V_TR}")
        e(f"v_add_u32 v{V_TR+2*b+1}, {b*65536}, v{V_TR+1}")
    e(f"v_lshlrev_b32 v{V_BOFF}, 1, v{T+1}")
    e(f"v_mov_b32 v{T+5}, 0x7ffffff0")
    e("v_cmp_gt_u32 vcc, 32, v0")
    e("s_nop 1")
    e(f"v_cndmask_b32 v{V_BOFF}, v{T+5}, v{V_BOFF}, vcc")
    e(f"v_mov_b32 v{T+5}, 0x3f80")
    e(f"v_cndmask_b32 v{V_BB}, 0, v{T+5}, vcc")
    for r in (V_BB+1, V_BB+2, V_BB+3, V_BA+1, V_BA+2, V_BA+3, V_BA+5, V_BA+6, V_BA+7):
        e(f"v_mov_b32 v{r}, 0")
    e(f"v_lshlrev_b32 v{V_OOFF}, 11, v{T+1}")
    e(f"v_lshlrev_b32 v{T+6}, 4, v{T}")
    e(f"v_add_u32 v{V_OOFF}, v{V_OOFF}, v{T+6}")
    e(f"v_lshrrev_b32 v{T+5}, 4, v0")
    e(f"v_and_b32 v{T+6}, 15, v0")
    e(f"v_xor_b32 v{T+6}, v{T+6}, v{T+5}")
    e(f"v_lshlrev_b32 v{T+5}, 11, v{T+5}")
    for i in range(4):
        e(f"v_xor_b32 v{T+7}, {4*i}, v{T+6}")
        e(f"v_lshlrev_b32 v{T+7}, 4, v{T+7}")
        e(f"v_add_u32 v{T+7}, v{T+7}, v{T+5}")
        e(f"v_add_u32 v{V_XD+i}, {i*(8192-1024)}, v{T+7}")
    e(f"v_and_b32 v{T+5}, 15, v{T+1}")
    e(f"v_xor_b32 v{T+6}, v{T+5}, v{T}")
    e(f"v_lshlrev_b32 v{T+6}, 4, v{T+6}")
    e(f"v_lshlrev_b32 v{T+7}, 8, v{T+1}")
    e(f"v_add_u32 v{T+7}, s{S_LDSW}, v{T+7}")
    e(f"v_add_u32 v{T+7}, {3*UNIT}, v{T+7}")
    e(f"v_add_u32 v{T+6}, v{T+6}, v{T+7}")
    for jj in range(8):
        e(f"v_xor_b32 v{V_XR+jj}, {32*jj}, v{T+6}")
    e(f"v_lshlrev_b32 v{T+5}, 4, v{T+5}")
    e(f"v_add_u32 v{V_OWR}, v{T+5}, v{T+7}")
    e(f"v_lshlrev_b32 v{T+5}, 3, v{T}")
    e(f"v_add_u32 v{V_OWR}, v{V_OWR}, v{T+5}")
    e(f"v_lshrrev_b32 v{V_TCH}, 4, v0")
    e(f"v_lshlrev_b32 v{V_TCH}, 11, v{V_TCH}")
    e(f"v_and_b32 v{T+5}, 15, v0")
    e(f"v_lshlrev_b32 v{T+5}, 7, v{T+5}")
    e(f"v_add_u32 v{V_TCH}, v{V_TCH}, v{T+5}")
    e(f"s_lshr_b32 s70, s2, 3")
    e(f"s_lshl_b32 s70, s70, 2")
    e(f"s_add_u32 s70, s70, s{S_WV}")
    e(f"s_lshl_b32 s70, s70, 14")
    e(f"s_mov_b32 s{S_TW}, s70")
    e(f"s_add_u32 s{S_TW+1}, s{S_TW}, {2<<20}")
    e(f"s_add_u32 s{S_TW+2}, s{S_TW}, {4<<20}")

    e("s_waitcnt lgkmcnt(0)")
    for (S, lo, size) in ((S_X0, 44, 8 << 20), (S_W, 46, 6 << 20), (S_B, 48, 6144), (S_OUT, 50, 8 << 20),
                          (S_DBG, 64, 256), (S_WS, 66, 256 << 20)):
        e(f"s_mov_b32 s{S}, s{lo}")
        e(f"s_and_b32 s{S+1}, s{lo+1}, 0xffff")
        e(f"s_mov_b32 s{S+2}, {size}")
        e(f"s_mov_b32 s{S+3}, 0x00020000")
    V_ST = 53
    stamp_n = [0]
    def stamp(kind=0):
        if not OPT["STAMP"]:
            return
        if OPT["STAMP"] == 9:
            if kind != 9:
                return
        elif (OPT["STAMP"] == 3) != (kind == 3):
            return
        if kind in (3, 9):
            e(f"s_memrealtime s[{S_TS}:{S_TS+1}]")
        else:
            e(f"s_memtime s[{S_TS}:{S_TS+1}]")
        e("s_waitcnt lgkmcnt(0)")
        g.ldsq = []
        e(f"v_writelane_b32 v{V_ST}, s{S_TS}, {stamp_n[0]}")
        stamp_n[0] += 1
    if OPT["STAMP"]:
        e(f"v_mov_b32 v{V_ST}, 0")
    stamp()
    stamp(3)
    stamp(9)
    if OPT["TOUCH"] & 2:
        e(f"v_lshlrev_b32 v{V_T64}, 6, v0")

    m0_cur = [None]
    soff_cur = {}
    def set_m0(val):
        if m0_cur[0] != val:
            e(f"s_add_u32 m0, s{S_LDSW}, {val}")
            m0_cur[0] = val
            return True
        return False
    def set_soff(sreg, base, const):
        if soff_cur.get(sreg) != (base, const):
            e(f"s_add_u32 s{sreg}, s{base}, {const}")
            soff_cur[sreg] = (base, const)
            return True
        return False

    def w_dma(beta):
        l, b = divmod(beta, 8)
        P, q = ORD[l][b]
        unit = unit_of(beta)
        out = []
        for part in range(2):
            if l == 0:
                const = P * 128 + part * 65536
                base = S_W0Q + q
            else:
                const = l * (2 << 20) + q * 32 * 2048 + P * 128
                base = S_WROW + part
            for i in range(4):
                off = f" offset:{i*1024}" if i else ""
                def pre(part=part, base=base, const=const):
                    a = set_m0(unit*UNIT + part*4096)
                    b_ = set_soff(S_T, base, const)
                    return a and not b_
                def post(i=i, off=off):
                    g.vm(f"buffer_load_dwordx4 v{V_WD+i}, s[{S_W}:{S_W+3}], s{S_T} offen{off} lds", ("w", beta))
                out.append((pre, post))
        return out

    def x0_dma(unit, n, tag, first_wait=None):
        out = []
        for half in range(2):
            for i in range(4):
                off = f" offset:{i*1024}" if i else ""
                def pre(i=i, half=half):
                    if first_wait is not None and i == 0 and half == 0:
                        g.wait(lds=first_wait)
                    a = set_m0(unit*UNIT + half*4096)
                    b_ = set_soff(S_T+7, S_XPG+n, half*16*2048)
                    return a and not b_
                def post(i=i, off=off):
                    g.vm(f"buffer_load_dwordx4 v{V_XD+i}, s[{S_X0}:{S_X0+3}], s{S_T+7} offen{off} lds", tag)
                out.append((pre, post))
        return out

    def runv(ops):
        for pre, post in ops:
            if pre():
                e("s_nop 0")
            post()

    def x0_read_ops(unit, q, half, tag):
        ops = [lambda: g.wait(vm=tag)]
        for jj in range(8):
            j = 4 * half + jj // 2
            s_ = jj % 2
            base = unit * UNIT - 3 * UNIT
            if base >= 0:
                ops.append(lambda j=j, s_=s_, jj=jj, base=base: g.lds(
                    f"ds_read_b128 {xf_reg(q, j, s_)}, v{V_XR+jj} offset:{base}", ("x0r", tag)))
            else:
                def f(j=j, s_=s_, jj=jj, base=base):
                    e(f"v_add_u32 v{V_T0}, {base}, v{V_XR+jj}")
                    g.lds(f"ds_read_b128 {xf_reg(q, j, s_)}, v{V_T0}", ("x0r", tag))
                ops.append(f)
        return ops

    def run(ops):
        for op in ops:
            op()

    def bias_load(l, i):
        g.vm(f"buffer_load_ushort v{V_BA+4*(i%2)}, v{V_BOFF}, s[{S_B}:{S_B+3}], s{S_T+1+l} offen offset:{64*i}", ("b", l, i))

    def bias_mfma(l, i):
        g.wait(vm=("b", l, i))
        a = ACC + 16 * i
        ba = V_BA + 4 * (i % 2)
        e(f"v_mfma_f32_32x32x16_bf16 v[{a}:{a+15}], v[{ba}:{ba+3}], v[{V_BB}:{V_BB+3}], 0")

    def touch_w(l):
        for k in range(4):
            e(f"s_add_u32 s70, s{S_TW+l}, {4096*k}")
            g.vm(f"buffer_load_dword v{V_DUM+k}, v{V_T64}, s[{S_W}:{S_W+3}], s70 offen", "touch")

    def touch_slow(l):
        g.vm(f"buffer_load_dword v{V_DUM+2}, v{V_TSL}, s[{S_W}:{S_W+3}], s{S_TW+l} offen", "touch")
    if OPT["TOUCH"] & 16:
        e(f"v_lshrrev_b32 v{V_TSL}, 2, v0")
        e(f"v_lshlrev_b32 v{V_TSL}, 11, v{V_TSL}")
        e(f"v_and_b32 v{V_T0}, 2, v0")
        e(f"v_lshlrev_b32 v{V_T0}, 9, v{V_T0}")
        e(f"v_add_u32 v{V_TSL}, v{V_TSL}, v{V_T0}")
        e(f"v_and_b32 v{V_T0}, 1, v0")
        e(f"v_lshlrev_b32 v{V_T0}, 6, v{V_T0}")
        e(f"v_add_u32 v{V_TSL}, v{V_TSL}, v{V_T0}")
        e(f"v_add_u32 v{V_TSL}, 384, v{V_TSL}")
        e(f"v_mov_b32 v{V_T0}, 0x7ffffff0")
        e("v_cmp_gt_u32 vcc, 32, v0")
        e("s_nop 1")
        e(f"v_cndmask_b32 v{V_TSL}, v{V_T0}, v{V_TSL}, vcc")
        touch_slow(0)
    for l in range(3):
        e(f"s_add_u32 s{S_T+1+l}, s{S_BOFF}, {l*2048}")
    bias_load(0, 0)
    bias_load(0, 1)
    runv(w_dma(0))
    PG = {(0, 0): 3, (0, 1): 4, (1, 0): 2, (1, 1): 3, (2, 0): 4, (2, 1): 3, (3, 0): 4, (3, 1): 3}
    def ptag(q, h):
        return ("x0", q, h)
    runv(x0_dma(3, 0, ptag(0, 0)))
    stamp(3)
    e(f"v_mov_b32 v{V_FZ+1}, 0")
    g.vm(f"buffer_store_dword v{V_FZ+1}, v{V_FZ}, s[{S_WS}:{S_WS+3}], 0 offen sc1", "fz")
    def gtouch(l):
        g.vm(f"buffer_load_dword v{V_DUM}, v{V_GT}, s[{S_W}:{S_W+3}], s{S_GT+l} offen", "touch")
    if OPT["TOUCH"] & 4:
        e(f"v_lshlrev_b32 v{V_GT}, 6, v0")
        e(f"v_mov_b32 v{V_T0}, 0x7ffffff0")
        e("v_cmp_gt_u32 vcc, 32, v0")
        e(f"s_lshl_b32 s70, s2, 2")
        e(f"v_cndmask_b32 v{V_GT}, v{V_T0}, v{V_GT}, vcc")
        e(f"s_add_u32 s70, s70, s{S_WV}")
        e(f"s_lshl_b32 s{S_GT}, s70, 11")
        e(f"s_add_u32 s{S_GT+1}, s{S_GT}, {2<<20}")
        e(f"s_add_u32 s{S_GT+2}, s{S_GT}, {4<<20}")
        for l in range(3):
            if OPT["GT"+str(l)] < 0:
                gtouch(l)
    if OPT["TOUCH"] & 8:
        e(f"s_lshl_b32 s70, s{S_C}, 2")
        e(f"s_add_u32 s70, s70, s{S_WV}")
        e(f"s_lshl_b32 s70, s70, 13")
        e(f"s_lshl_b32 s71, s{S_RB}, 18")
        e(f"s_add_u32 s70, s70, s71")
        g.vm(f"buffer_load_dword v{V_DUM+2}, v{V_TCH}, s[{S_X0}:{S_X0+3}], s70 offen", "touch")
    if OPT["TOUCH"] & 1:
        e(f"s_lshl_b32 s70, s{S_C}, 2")
        e(f"s_add_u32 s70, s70, s{S_WV}")
        e(f"s_lshl_b32 s70, s70, 13")
        e(f"s_lshl_b32 s71, s{S_RB}, 18")
        e(f"s_add_u32 s70, s70, s71")
        g.vm(f"buffer_load_dword v{V_DUM+2}, v{V_TCH}, s[{S_X0}:{S_X0+3}], s70 offen", "touch")
        touch_w(0)
    runv(x0_dma(4, 1, ptag(0, 1)))
    runv(x0_dma(2, 2, ptag(1, 0)))
    runv(w_dma(1))
    if OPT["WARM"]:
        e(f"s_add_u32 s70, s{S_XOFF}, {XB[1]}")
        g.vm(f"buffer_load_dword v{V_DUM+3}, v{V_LANE16}, s[{S_WS}:{S_WS+3}], s70 offen", "touch")
        e(f"s_add_u32 s70, s{S_XOFF}, {XB[2]}")
        g.vm(f"buffer_load_dword v{V_DUM+3}, v{V_LANE16}, s[{S_WS}:{S_WS+3}], s70 offen", "touch")
        g.vm(f"buffer_load_dword v{V_DUM+3}, v{V_LANE16}, s[{S_OUT}:{S_OUT+3}], s{S_OUTOFF} offen", "touch")
    stamp()
    stamp(3)
    g.wait(vm=("w", 0))
    stamp(3)
    g.wait(vm=ptag(0, 0))
    stamp(3)
    run(x0_read_ops(3, 0, 0, ptag(0, 0)))
    for pc in range(16):
        i, gg = divmod(pc, 4)
        r = X0F + i * 16 + gg * 4
        e(f"v_xor_b32 v{V_T0}, {16*pc}, v{V_OWR}")
        g.lds(f"ds_read_b64 v[{r+2}:{r+3}], v{V_T0}", ("own", pc))
    if not OPT["INSTR"]:
        for pc in range(16):
            i, gg = divmod(pc, 4)
            r = X0F + i * 16 + gg * 4
            g.wait(lds=("own", pc))
            if pc == 15:
                runv(x0_dma(3, 3, ptag(1, 1)))
            e(f"v_lshlrev_b32 v{r}, 16, v{r+2}")
            e(f"v_and_b32 v{r+1}, s{S_MASK}, v{r+2}")
            e(f"v_lshlrev_b32 v{r+2}, 16, v{r+3}")
            e(f"v_and_b32 v{r+3}, s{S_MASK}, v{r+3}")
        stamp()
        stamp(3)
    else:
        g.wait(lds=("own", 15))
        runv(x0_dma(3, 3, ptag(1, 1)))
        stamp()
    e("s_barrier")
    stamp(3)

    fill = defaultdict(list)
    fill2 = defaultdict(list)
    used = defaultdict(int)
    CAP = OPT["CAP"]
    for t in range(NT + 200):
        used[t] = 2 + (1 if t % 2 == 0 else 0) if t < NT else 0
        if t % OPT["R"] == 1 % OPT["R"] and t < NT - 64:
            used[t] += 2

    def at(t, op, cost=1):
        fill[t].append(op)
        used[t] += cost

    def chain(t0, ops, cap=None):
        t = t0
        c = cap if cap is not None else CAP
        for op in ops:
            while used[t] >= c:
                t += 1
            at(t, op)
        return t + 1

    vmq = defaultdict(list)
    def vsched(cls, earliest, deadline, ops, hard):
        for n, (pre, post) in enumerate(ops):
            dl = deadline[n] if isinstance(deadline, (list, tuple)) else deadline
            hd = hard[n] if isinstance(hard, (list, tuple)) else hard
            vmq[cls].append((earliest, dl, pre, post, hd))

    mf = [None] * NT
    first_use = {}
    last_use = {}
    done = {}
    start = {}
    seen = set()
    use_t = {}
    for beta in range(NBLK):
        l, b = divmod(beta, 8)
        P, q = ORD[l][b]
        firstq = (l, q) not in seen
        seen.add((l, q))
        lastP = all(ORD[l][bb][0] != P for bb in range(b + 1, 8))
        inter = firstq and (not lastP or OPT["INTER_LAST"])
        if inter:
            seq = [(ns, j, s_) for j in range(8) for ns in range(2) for s_ in range(2)]
        else:
            seq = [(ns, j, s_) for ns in range(2) for j in range(8) for s_ in range(2)]
        for n, (ns, j, s_) in enumerate(seq):
            i = 2 * P + ns
            t = beta * 32 + n
            mf[t] = (l, beta, P, q, ns, i, j, s_)
            first_use.setdefault((l, q), t)
            use_t.setdefault((l, q, j, s_), t)
            last_use[(l, q)] = t
            done[(l, i)] = t
            start.setdefault((l, i), t)
    LAT = OPT["LAT"]
    if OPT["INSTR"]:
        ops = []
        for pc in range(16):
            i, gg = divmod(pc, 4)
            r = X0F + i * 16 + gg * 4
            ops.append(lambda r=r: e(f"v_lshlrev_b32 v{r}, 16, v{r+2}"))
            ops.append(lambda r=r: e(f"v_and_b32 v{r+1}, s{S_MASK}, v{r+2}"))
            ops.append(lambda r=r: e(f"v_lshlrev_b32 v{r+2}, 16, v{r+3}"))
            ops.append(lambda r=r: e(f"v_and_b32 v{r+3}, s{S_MASK}, v{r+3}"))
        chain(20, ops)
    for l in range(3):
        for i in range(4):
            ts = start[(l, i)]
            fill[ts].insert(0, lambda l=l, i=i: bias_mfma(l, i))
            used[ts] += 3
            if not (l == 0 and i < 2):
                pl, pi = (l, i - 2) if i >= 2 else (l - 1, i + 2)
                tl = max(start[(pl, pi)] + 2, ts - 48)
                at(tl, lambda l=l, i=i: bias_load(l, i))
    BPOS = OPT["BPOS"]
    for beta in range(NBLK):
        t = beta * 32 + BPOS
        if beta + 1 < NBLK:
            if beta == 1:
                at(t, lambda: g.wait(vm="fz"))
            at(t, lambda beta=beta: g.wait(vm=("w", beta + 1)))
            at(t, lambda: e("s_barrier"))
            if beta == 1:
                at(t, lambda: g.vm(f"buffer_atomic_add v{V_ONE}, v{V_ATOM}, s[{S_DBG}:{S_DBG+3}], 0 offen sc1", "atom"))
        if beta <= 3:
            nxt = [beta + 2]
        elif beta == 4:
            nxt = [6, 7, 8]
        else:
            nxt = [beta + 4]
        for nb in nxt:
            if nb < NBLK and not OPT["NOW"]:
                vsched("w", t + 1, 32 * (nb - 1) + BPOS - OPT["LATW"], w_dma(nb), 32 * (nb - 1) + BPOS - 1)
    def stage(t, q, h, nxt, tnext=None):
        tag = ptag(q, h)
        u = PG[(q, h)]
        t = chain(t, x0_read_ops(u, q, h, tag))
        if nxt is not None:
            n = 2 * nxt[0] + nxt[1]
            vsched("x0", t, tnext - LAT, x0_dma(u, n, ptag(*nxt), first_wait=("x0r", tag)), tnext - 1)
    ST = {(0, 1): 2, (1, 0): 8, (1, 1): 34, (2, 0): 56, (2, 1): 90, (3, 0): 112, (3, 1): 132}
    stage(ST[(0, 1)], 0, 1, (2, 0), ST[(2, 0)])
    stage(ST[(1, 0)], 1, 0, None)
    stage(ST[(1, 1)], 1, 1, (2, 1), ST[(2, 1)])
    stage(ST[(2, 0)], 2, 0, (3, 0), ST[(3, 0)])
    stage(ST[(2, 1)], 2, 1, (3, 1), ST[(3, 1)])
    stage(ST[(3, 0)], 3, 0, None)
    stage(ST[(3, 1)], 3, 1, None)
    if OPT["TOUCH"] & 4:
        for l in range(3):
            if OPT["GT"+str(l)] >= 0:
                at(OPT["GT"+str(l)], lambda l=l: gtouch(l))
    if OPT["TOUCH"] & 16:
        at(OPT["TS1"], lambda: touch_slow(1))
        at(OPT["TS2"], lambda: touch_slow(2))
    if OPT["TOUCH"] & 2:
        at(OPT["TW1"], lambda: touch_w(1), 8)
        at(OPT["TW2"], lambda: touch_w(2), 8)
    def switch_tr():
        e(f"v_lshrrev_b32 v{V_T0}, 5, v0")
        e(f"v_lshlrev_b32 v{V_T0}, 9, v{V_T0}")
        for k in range(6):
            e(f"v_sub_u32 v{V_TR+k}, v{V_TR+k}, v{V_T0}")
    switch_at = 256 - D

    def epi_ops(l, i, dst):
        ops = []
        for d in range(8):
            a0 = ACC + i * 16 + 2 * d
            x0 = X0F + i * 16 + 2 * d
            src = OWN + i * 8 + d
            t0 = V_ET + (d % 4) * 2
            if l == 0:
                ops.append(lambda a0=a0, x0=x0, t0=t0: e(f"v_fma_f32 v{t0}, v{x0}, v{a0}, v{x0}"))
                ops.append(lambda a0=a0, x0=x0, t0=t0: e(f"v_fma_f32 v{t0+1}, v{x0+1}, v{a0+1}, v{x0+1}"))
            else:
                ops.append(lambda src=src, t0=t0: e(f"v_lshlrev_b32 v{t0}, 16, v{src}"))
                ops.append(lambda src=src, t0=t0: e(f"v_and_b32 v{t0+1}, s{S_MASK}, v{src}"))
                ops.append(lambda a0=a0, x0=x0, t0=t0: e(f"v_fma_f32 v{t0}, v{x0}, v{a0}, v{t0}"))
                ops.append(lambda a0=a0, x0=x0, t0=t0: e(f"v_fma_f32 v{t0+1}, v{x0+1}, v{a0+1}, v{t0+1}"))
            ops.append(lambda t0=t0, d=d: e(f"v_cvt_pk_bf16_f32 v{dst+d}, v{t0}, v{t0+1}"))
        return ops

    def ready_issue():
        e(f"s_lshl_b32 s{S_T+5}, s{S_RB}, 2")
        e(f"v_mov_b32 v{V_RDY+1}, s{S_T+5}")
        g.vm(f"buffer_load_dword v{V_RDY}, v{V_RDY+1}, s[{S_DBG}:{S_DBG+3}], 0 offen sc1", "rdy")

    def ready_check():
        g.wait(vm="rdy")
        g.label("L_rdy")
        e(f"v_readfirstlane_b32 s70, v{V_RDY}")
        e("s_nop 3")
        e("s_lshr_b32 s71, s70, 4")
        e("s_and_b32 s71, s71, 0x0f0f0f0f")
        e("s_and_b32 s72, s70, 0x0f0f0f0f")
        e("s_add_u32 s71, s71, s72")
        e("s_mul_i32 s71, s71, 0x01010101")
        e("s_lshr_b32 s71, s71, 24")
        e("s_cmp_lg_u32 s71, 8")
        e("s_cbranch_scc1 L_rdy_slow")
        g.label("L_rdy_out")
        e(f"s_cmp_eq_u32 s70, s{S_XCC}")
        e(f"s_cselect_b32 s{S_FAST}, {OPT['FAST']}, 0")
        slow.append(f"""L_rdy_slow:
    s_sub_u32 s74, s74, 1
    s_cbranch_scc1 L_rdy_out
    buffer_load_dword v{V_RDY}, v{V_RDY+1}, s[{S_DBG}:{S_DBG+3}], 0 offen sc1
    s_waitcnt vmcnt(0)
    s_branch L_rdy""")

    flag_t = {}
    prev_epi_end = 0
    for l in range(3):
        for i in sorted(range(4), key=lambda i: done[(l, i)]):
            tc = max(done[(l, i)] + 5, prev_epi_end)
            own_last = max(t for t in range(l * 256, l * 256 + 256) if mf[t][3] == i and mf[t][6] == 0)
            direct = own_last < tc
            TM = TMPN if i % 2 == 0 else TMPN2
            dst = OWN + i * 8 if direct else TM
            tend = chain(tc, epi_ops(l, i, dst), cap=CAP + (OPT["EPI_PRI"] if l < 2 else OPT["EPI_LAST"]))
            prev_epi_end = tend
            if l < 2:
                assert tend <= start[(l + 1, i)], (l, i, tend, start[(l + 1, i)])
                assert tend <= use_t[(l + 1, i, 0, 0)], (l, i, tend)
            if l < 2:
                voff = V_LANE16 if i < 2 else V_LANE16B
                def st(dst=dst, voff=voff, l=l, i=i):
                    uid = f"{l}_{i}"
                    stamp(3)
                    set_soff(S_T+4, S_XOFF, XB[l+1])
                    e(f"s_cmp_lg_u32 s{S_FAST}, 0")
                    e(f"s_cbranch_scc1 L_sf{uid}")
                    for s_ in range(2):
                        r = dst + 4 * s_
                        off = (i % 2) * 2048 + s_ * 1024
                        e(f"buffer_store_dwordx4 v[{r}:{r+3}], v{voff}, s[{S_WS}:{S_WS+3}], s{S_T+4} offen offset:{off} sc1")
                    e(f"s_branch L_sj{uid}")
                    g.label(f"L_sf{uid}")
                    for s_ in range(2):
                        r = dst + 4 * s_
                        off = (i % 2) * 2048 + s_ * 1024
                        g.vm(f"buffer_store_dwordx4 v[{r}:{r+3}], v{voff}, s[{S_WS}:{S_WS+3}], s{S_T+4} offen offset:{off}", ("st", l, i))
                    g.label(f"L_sj{uid}")
                at(tend, st, 5)
                tf = tend + OPT["FLAG_DELAY"]
                flag_t[(l, i)] = tf
                def fl(l=l, i=i):
                    uid = f"{l}_{i}"
                    if OPT["NOPOLL"]:
                        return
                    stamp(3)
                    g.wait(vm=("st", l, i))
                    stamp(3)
                    e(f"v_mov_b32 v{V_T0+1}, {l+1}")
                    e(f"s_cmp_lg_u32 s{S_FAST}, 0")
                    e(f"s_cbranch_scc1 L_ff{uid}")
                    e(f"buffer_store_dword v{V_T0+1}, v{V_FLAGST}, s[{S_WS}:{S_WS+3}], 0 offen offset:{32*i} sc1")
                    e(f"s_branch L_fj{uid}")
                    g.label(f"L_ff{uid}")
                    g.vm(f"buffer_store_dword v{V_T0+1}, v{V_FLAGST}, s[{S_WS}:{S_WS+3}], 0 offen offset:{32*i}", "fl")
                    g.label(f"L_fj{uid}")
                at(tf, fl, 5)
                if l == 0 and tc == min(done[(0, k)] for k in range(4)) + 5:
                    at(tc - 50, ready_issue, 3)
                    at(tc - 4, ready_check, 12)
                if not direct:
                    tm = max(own_last + 1, tend + 1)
                    tmv = chain(tm, [lambda d=d, i=i, TM=TM: e(f"v_mov_b32 v{OWN+i*8+d}, v{TM+d}") for d in range(8)])
                    assert tmv + 1 <= use_t[(l + 1, i, 0, 0)], (l, i, tmv)
            else:
                for s_ in range(2):
                    r = dst + 4 * s_
                    at(tend + 1, lambda r=r: (e("s_nop 1"), e(f"v_permlane32_swap_b32 v{r}, v{r+2}"), e(f"v_permlane32_swap_b32 v{r+1}, v{r+3}")), 3)
                    at(tend + 2, lambda r=r, s_=s_, i=i: g.vm(
                        f"buffer_store_dwordx4 v[{r}:{r+3}], v{V_OOFF}, s[{S_OUT}:{S_OUT+3}], s{S_OUTOFF} offen offset:{64*i+32*s_}{OUTF}", "out"))
    pid = 0
    for l in (1, 2):
        for q in range(4):
            tfu = first_use[(l, q)]
            tfree = last_use[(l - 1, q)] + 1
            tchk = max(tfu - OPT["XLEAD"], tfree, flag_t[(l - 1, q)] + OPT["FLAG_VIS"] + OPT["POLL_CHK"])
            tp = tchk - OPT["POLL_CHK"]
            pid += 1

            def poll_issue(q=q, pid=pid):
                g.vm(f"buffer_load_dword v{V_POLL}, v{V_POLLOFF}, s[{S_WS}:{S_WS+3}], 0 offen offset:{32*q} sc1", ("poll", pid))

            def poll_check(l=l, q=q, pid=pid):
                if OPT["NOPOLL"]:
                    return
                stamp(3)
                g.wait(vm=("poll", pid))
                stamp(3)
                e(f"v_cmp_gt_u32 s[{S_VCC}:{S_VCC+1}], {l}, v{V_POLL}")
                e("s_nop 3")
                e(f"s_cmp_lg_u64 s[{S_VCC}:{S_VCC+1}], 0")
                e(f"s_cbranch_scc1 L_slow{pid}")
                g.label(f"L_back{pid}")
                stamp(3)
                slow.append(f"""L_slow{pid}:
    buffer_load_dword v{V_POLL}, v{V_POLLOFF}, s[{S_WS}:{S_WS+3}], 0 offen offset:{32*q} sc1
    s_waitcnt vmcnt(0)
    v_cmp_gt_u32 s[{S_VCC}:{S_VCC+1}], {l}, v{V_POLL}
    s_sub_u32 s74, s74, 1
    s_cbranch_scc1 L_back{pid}
    s_nop 1
    s_cmp_lg_u64 s[{S_VCC}:{S_VCC+1}], 0
    s_cbranch_scc1 L_slow{pid}
    s_branch L_back{pid}""")
            at(tp, poll_issue)
            at(tchk, poll_check, 5)
            ops = []
            dls = []
            for j in range(1, 8):
                for s_ in range(2):
                    voff = V_LANE16 if q < 2 else V_LANE16B
                    off = (q % 2) * 2048 + s_ * 1024
                    def pre(l=l, j=j, s_=s_):
                        set_soff(S_T+6, S_XOFF+j, XB[l])
                        return False
                    def post(l=l, q=q, j=j, s_=s_, voff=voff, off=off):
                        g.vm(f"buffer_load_dwordx4 {xf_reg(q, j, s_)}, v{voff}, s[{S_WS}:{S_WS+3}], s{S_T+6} offen offset:{off} sc1",
                             ("x", l, q, j))
                    ops.append((pre, post))
                    dls.append(use_t[(l, q, j, s_)] - LAT)
            if not OPT["NOX"]:
                vsched("x", tchk + 1, dls, ops, [d + LAT - 1 for d in dls])

    heads = {c: 0 for c in vmq}
    last = -100
    late = []
    t = 0
    while any(heads[c] < len(vmq[c]) for c in vmq):
        cands = [(vmq[c][heads[c]][1], c) for c in vmq if heads[c] < len(vmq[c]) and vmq[c][heads[c]][0] <= t]
        if cands:
            dl, c = min(cands)
            if (t % OPT["R"] == 1 % OPT["R"]) or (dl <= t and t - last >= 1):
                ea, dl, pre, post, hd = vmq[c][heads[c]]
                assert t <= hd, ("hard deadline missed", c, t, hd)
                fill[t].append(pre)
                fill2[t].append(post)
                heads[c] += 1
                last = t
                if t > dl:
                    late.append((c, t, dl))
        t += 1
    if late:
        sys.stderr.write(f"late vm ops: {len(late)}  worst {max(x[1]-x[2] for x in late)}  first {late[:3]}\n")

    def wf_regs(t):
        return WF + (t % NWF) * 4

    def issue_reads(t):
        l, beta, P, q, ns, i, j, s_ = mf[t]
        unit = unit_of(beta)
        base = unit * UNIT
        vb = V_TR + 2 * (base >> 16) + ns
        b = wf_regs(t)
        for tt in range(2):
            if l == 0:
                off = (32 * j + 16 * s_ + 4 * tt) * 128
            else:
                off = (32 * j + 16 * s_ + 8 * tt) * 128
            off += base & 0xffff
            g.lds(f"ds_read_b64_tr_b16 v[{b+2*tt}:{b+2*tt+1}], v{vb} offset:{off}", ("wf", t))

    for t in range(D):
        issue_reads(t)
    for t in range(NT):
        if OPT["STAMP"] == 1 and t % 32 == 0:
            stamp()
        if OPT["STAMP"] == 3 and t % 32 == 0 and t < 190:
            stamp(3)
        if OPT["STAMP"] == 2 and OPT["ST0"] <= t < OPT["ST0"] + 56 * OPT["STEP"] and (t - OPT["ST0"]) % OPT["STEP"] == 0:
            stamp()
        for op in fill.get(t, []):
            op()
        if t == switch_at:
            switch_tr()
        if t + D < NT:
            issue_reads(t + D)
        for op in fill2.get(t, []):
            op()
        l, beta, P, q, ns, i, j, s_ = mf[t]
        vmtag = ("x", l, q, j) if (l > 0 and j > 0) else None
        ldtag = ("wf", t + 1) if (t % 2 == 0 and t + 1 < NT) else ("wf", t)
        if l == 0:
            xt = ("x0r", ptag(q, j // 4))
            if xt in g.ldsq:
                g.wait(lds=xt)
        g.wait(vm=vmtag, lds=ldtag)
        b = wf_regs(t)
        a = ACC + i * 16
        e(f"v_mfma_f32_32x32x16_bf16 v[{a}:{a+15}], v[{b}:{b+3}], {xf_reg(q, j, s_)}, v[{a}:{a+15}]")
    e("s_nop 15")
    for t in range(NT, NT + 200):
        if t in fill:
            for op in fill[t]:
                op()
    extra = [t for t in fill if t >= NT + 200]
    assert not extra, extra
    stamp()
    stamp(3)
    e("s_waitcnt vmcnt(0)")
    stamp()
    stamp(9)
    if OPT["STAMP"]:
        e(f"s_lshl_b32 s70, s2, 2")
        e(f"s_add_u32 s70, s70, s{S_WV}")
        e(f"s_lshl_b32 s70, s70, 8")
        e(f"s_add_u32 s70, s70, {1<<20}")
        e(f"v_lshlrev_b32 v{V_T0}, 2, v0")
        e(f"v_writelane_b32 v{V_ST}, s74, 63")
        e(f"v_writelane_b32 v{V_ST}, s{S_FAST}, 62")
        e(f"buffer_store_dword v{V_ST}, v{V_T0}, s[{S_WS}:{S_WS+3}], s70 offen")
        e("s_waitcnt vmcnt(0)")
    g.label("L_end")
    e("s_endpgm")
    for sl in slow:
        g.L.append(sl)
    g.label("L_codeend")
    g.L.append(""".section .rodata,"a"
.p2align 6
.amdhsa_kernel standalone__dcn_v2_cross__recsys_kernel
  .amdhsa_next_free_vgpr 512
  .amdhsa_next_free_sgpr 102
  .amdhsa_accum_offset 256
  .amdhsa_group_segment_fixed_size 0
  .amdhsa_kernarg_size 48
  .amdhsa_user_sgpr_count 2
  .amdhsa_user_sgpr_kernarg_segment_ptr 1
  .amdhsa_system_sgpr_workgroup_id_x 1
.end_amdhsa_kernel""")
    return "\n".join(g.L) + "\n"


if __name__ == "__main__":
    out = sys.argv[1] if len(sys.argv) > 1 else "standalone__dcn_v2_cross__recsys.s"
    open(out, "w").write(gen())
```

```python
import sys
from collections import defaultdict

OPT = dict(
    D=4,
    BPOS=18,
    INTER_LAST=1,
    CAP=5,
    OUTF=0,
    INSTR=1,
    EPI_LAST=2,
    GT0=-1,
    GT1=8,
    GT2=100,
    TS1=140,
    TS2=396,
    CODEPF=0,
    NOPOLL=0,
    NOX=0,
    NOW=0,
    LATW=52,
    MAP=0,
    WARM=0,
    EPI_PRI=1,
    XLEAD=26,
    LAT=22,
    R=2,
    POLL_CHK=16,
    FLAG_DELAY=16,
    STAMP=0,
    TOUCH=20,
    TW1=64,
    TW2=300,
    FLAG_VIS=6,
    FAST=1,
    ST0=192,
    STEP=2,
)
for a in sys.argv[2:]:
    k, v = a.split("=")
    OPT[k] = int(v)

D = OPT["D"]
NWF = D + 2

ACC = 64
X0F = 128
OWN = 192
WF = 224
TMPN = 248
TMPN2 = 34
V_LANE16 = 1
V_LANE16B = 2
V_TR = 3
V_WD = 9
V_FLAGST = 13
V_POLLOFF = 14
V_POLL = 15
V_BA = 16
V_BB = 56
V_DUM = 60
V_BOFF = 24
V_OOFF = 25
V_ET = 26
V_XR = 34
V_XD = 42
V_T0 = 46
V_ATOM = 54
V_RDY = 49
V_GT = 48
V_FZ = 26
V_T64 = 48
V_TSL = 51
V_ONE = 55
V_OWR = 52
V_TCH = 51

S_X0, S_W, S_B, S_OUT, S_WS, S_DBG = 4, 8, 12, 16, 20, 24
S_RB, S_C, S_WV = 28, 29, 30
S_WROW = 32
S_XOFF = 34
S_LDSW = 42
S_T = 44
S_ROW0B = 52
S_WROW0 = 54
S_BOFF = 56
S_OUTOFF = 57
S_MASK = 58
S_VCC = 60
S_TS = 62
S_OWNB = 77
S_TW = 78
S_FAST = 76
S_XCC = 75
S_GT = 94
S_W0Q = 82
S_XPG = 86

XB = {1: 16 << 20, 2: 24 << 20}
OUTF = {0: "", 1: " sc1", 2: " nt", 3: " sc0 sc1"}[OPT["OUTF"]]
UNIT = 32768
NUNIT = 5


def unit_of(beta):
    return {0: 0, 1: 1, 2: 2, 3: 0, 4: 1}.get(beta, (beta + 2) % 5)


def xf_reg(q, j, s):
    if j == 0:
        b = OWN + (q * 2 + s) * 4
        return f"v[{b}:{b+3}]"
    b = ((q * 7 + (j - 1)) * 2 + s) * 4
    return f"a[{b}:{b+3}]"


class G:
    def __init__(s):
        s.L = []
        s.ldsq = []
        s.vmq = []
        s.cnt = 0

    def e(s, txt):
        s.L.append("    " + txt)
        s.cnt += 1

    def label(s, name):
        s.L.append(name + ":")

    def c(s, txt):
        s.L.append("    ; " + txt)

    def lds(s, txt, tag=None):
        s.e(txt)
        s.ldsq.append(tag)

    def vm(s, txt, tag=None):
        s.e(txt)
        s.vmq.append(tag)

    def wait(s, vm=None, lds=None):
        parts = []
        if vm is not None and vm in s.vmq:
            idx = len(s.vmq) - 1 - s.vmq[::-1].index(vm)
            n = len(s.vmq) - 1 - idx
            s.vmq = s.vmq[idx + 1:]
            parts.append(f"vmcnt({min(n, 63)})")
        if lds is not None and lds in s.ldsq:
            idx = len(s.ldsq) - 1 - s.ldsq[::-1].index(lds)
            n = len(s.ldsq) - 1 - idx
            s.ldsq = s.ldsq[idx + 1:]
            parts.append(f"lgkmcnt({min(n, 15)})")
        if parts:
            s.e("s_waitcnt " + " ".join(parts))

    def wait_all(s):
        s.e("s_waitcnt vmcnt(0) lgkmcnt(0)")
        s.vmq = []
        s.ldsq = []


ORD = [
    [(0, 0), (1, 0), (0, 1), (0, 2), (0, 3), (1, 1), (1, 2), (1, 3)],
    [(0, 0), (0, 1), (1, 0), (0, 2), (0, 3), (1, 1), (1, 2), (1, 3)],
    [(0, 0), (1, 0), (0, 1), (1, 1), (0, 2), (1, 2), (0, 3), (1, 3)],
]
NBLK = 24
NT = NBLK * 32


def gen():
    g = G()
    e = g.e
    hdr = """; DCN-v2 cross network, fused 3-layer kernel (generated by gen.py)
; @launch grid=(256,1,1) block=(256,1,1) lds=163840
.amdgcn_target "amdgcn-amd-amdhsa--gfx950"
.text
.globl standalone__dcn_v2_cross__recsys_kernel
.p2align 8
.type standalone__dcn_v2_cross__recsys_kernel,@function
standalone__dcn_v2_cross__recsys_kernel:"""
    g.L.append(hdr)
    slow = []

    e("s_cmp_ge_u32 s2, 256")
    e("s_cbranch_scc1 L_end")
    e("s_load_dwordx4 s[44:47], s[0:1], 0")
    e("s_load_dwordx4 s[48:51], s[0:1], 16")
    e("s_load_dwordx4 s[64:67], s[0:1], 32")
    if OPT["CODEPF"]:
        e("s_getpc_b64 s[90:91]")
        g.label("L_pc")
        e("s_lshr_b32 s92, s2, 3")
        e("s_lshl_b32 s92, s92, 8")
        e("v_add_u32 v47, s92, v0")
        e("v_lshlrev_b32 v47, 6, v47")
        e("v_mov_b32 v48, L_codeend-L_pc-64")
        e("v_min_u32 v47, v47, v48")
        e("global_load_dword v63, v47, s[90:91]")
    e("v_lshrrev_b32 v46, 6, v0")
    e("v_and_b32 v0, 63, v0")
    e("s_and_b32 s68, s2, 7")
    e("s_lshr_b32 s69, s2, 3")
    e(f"v_readfirstlane_b32 s{S_WV}, v46")
    if OPT["MAP"] == 0:
        e(f"s_and_b32 s{S_C}, s69, 7")
        e("s_lshr_b32 s69, s69, 3")
    else:
        e(f"s_lshr_b32 s{S_C}, s69, 2")
        e("s_and_b32 s69, s69, 3")
    e("s_lshl_b32 s68, s68, 2")
    e(f"s_add_u32 s{S_RB}, s68, s69")
    e(f"s_mov_b32 s{S_MASK}, 0xffff0000")
    e("s_mov_b32 s74, 200000")
    e(f"s_lshl_b32 s{S_LDSW}, s{S_WV}, 13")
    e(f"s_lshl_b32 s68, s{S_RB}, 7")
    e(f"s_lshl_b32 s69, s{S_WV}, 5")
    e("s_add_u32 s68, s68, s69")
    e(f"s_lshl_b32 s{S_ROW0B}, s68, 11")
    e(f"s_lshl_b32 s{S_BOFF}, s{S_C}, 8")
    e(f"s_add_u32 s{S_OUTOFF}, s{S_ROW0B}, s{S_BOFF}")
    e(f"s_lshl_b32 s68, s{S_RB}, 2")
    e(f"s_add_u32 s68, s68, s{S_WV}")
    e("s_lshl_b32 s69, s68, 16")
    for j in range(8):
        e(f"s_add_u32 s70, s{S_C}, {j}")
        e("s_and_b32 s70, s70, 7")
        e("s_lshl_b32 s70, s70, 13")
        e(f"s_add_u32 s{S_XOFF+j}, s69, s70")
    for i in range(2):
        e(f"s_lshl_b32 s70, s{S_WV}, 1")
        e(f"s_add_u32 s70, s70, {i}")
        e(f"s_add_u32 s70, s70, s{S_C}")
        e("s_and_b32 s70, s70, 7")
        e("s_lshl_b32 s70, s70, 18")
        e(f"s_add_u32 s{S_WROW+i}, s70, s{S_BOFF}")
    e(f"s_lshr_b32 s71, s{S_WV}, 1")
    e(f"s_add_u32 s71, s71, s{S_C}")
    e(f"s_lshl_b32 s73, s{S_WV}, 1")
    e("s_and_b32 s73, s73, 3")
    e("s_lshl_b32 s73, s73, 16")
    e(f"s_add_u32 s73, s73, s{S_BOFF}")
    for q in range(4):
        e(f"s_add_u32 s70, s71, {2*q}")
        e("s_and_b32 s70, s70, 7")
        e("s_lshl_b32 s70, s70, 18")
        e(f"s_add_u32 s{S_W0Q+q}, s70, s73")
    for n in range(8):
        e(f"s_add_u32 s70, s{S_C}, {n}")
        e("s_and_b32 s70, s70, 7")
        e("s_lshl_b32 s70, s70, 8")
        e(f"s_add_u32 s{S_XPG+n}, s70, s{S_ROW0B}")
    e("s_lshl_b32 s72, s68, 7")
    e(f"s_lshl_b32 s73, s{S_C}, 2")
    e("s_add_u32 s73, s73, s72")
    e(f"v_lshlrev_b32 v{V_LANE16}, 4, v0")
    e(f"v_add_u32 v{V_LANE16B}, 4096, v{V_LANE16}")
    T = V_T0
    e(f"v_lshrrev_b32 v{T}, 5, v0")
    e(f"v_and_b32 v{T+1}, 31, v0")
    e(f"v_lshrrev_b32 v{T+2}, 2, v0")
    e(f"v_and_b32 v{T+2}, 3, v{T+2}")
    e(f"v_and_b32 v{T+3}, 3, v0")
    e(f"v_lshrrev_b32 v{T+4}, 4, v0")
    e(f"v_and_b32 v{T+4}, 1, v{T+4}")
    e(f"v_lshlrev_b32 v{V_FLAGST}, 5, v0")
    e(f"v_add_u32 v{V_FLAGST}, s73, v{V_FLAGST}")
    e(f"v_mov_b32 v{T+5}, 0x7ffffff0")
    e("v_cmp_gt_u32 vcc, 4, v0")
    e("s_nop 1")
    e(f"v_cndmask_b32 v{T+6}, v{T+5}, v{V_FLAGST}, vcc")
    e("v_cmp_gt_u32 vcc, 1, v0")
    e("s_nop 1")
    e(f"v_cndmask_b32 v{V_FLAGST}, v{T+5}, v{V_FLAGST}, vcc")
    e(f"v_mov_b32 v{V_FZ}, v{T+6}")
    e(f"v_and_b32 v{V_POLLOFF}, 7, v0")
    e(f"v_lshlrev_b32 v{V_POLLOFF}, 2, v{V_POLLOFF}")
    e(f"v_add_u32 v{V_POLLOFF}, s72, v{V_POLLOFF}")
    e(f"s_lshl_b32 s70, s{S_RB}, 2")
    e(f"v_mov_b32 v{V_ATOM}, s70")
    e(f"s_lshl_b32 s71, s{S_WV}, 6")
    e(f"v_or_b32 v{T+7}, s71, v0")
    e(f"v_cmp_eq_u32 vcc, 0, v{T+7}")
    e("s_nop 1")
    e(f"v_cndmask_b32 v{V_ATOM}, v{T+5}, v{V_ATOM}, vcc")
    e(f"s_getreg_b32 s{S_XCC}, hwreg(HW_REG_XCC_ID)")
    e(f"s_and_b32 s{S_XCC}, s{S_XCC}, 7")
    e(f"s_lshl_b32 s{S_XCC}, s{S_XCC}, 2")
    e(f"s_lshl_b32 s70, 1, s{S_XCC}")
    e(f"v_mov_b32 v{V_ONE}, s70")
    e(f"s_lshl_b32 s{S_XCC}, 8, s{S_XCC}")
    e(f"v_lshrrev_b32 v{T+5}, 3, v0")
    e(f"v_and_b32 v{T+6}, 7, v0")
    e(f"v_lshrrev_b32 v{T+7}, 4, v0")
    e(f"v_and_b32 v{T+7}, 1, v{T+7}")
    e(f"v_lshlrev_b32 v{T+7}, 2, v{T+7}")
    e(f"v_xor_b32 v{T+6}, v{T+6}, v{T+7}")
    e(f"v_lshlrev_b32 v{T+6}, 4, v{T+6}")
    e(f"v_lshlrev_b32 v{T+5}, 11, v{T+5}")
    e(f"v_add_u32 v{V_WD}, v{T+5}, v{T+6}")
    for i in range(1, 4):
        e(f"v_add_u32 v{V_WD+i}, {i*15360}, v{V_WD}")
    e(f"v_lshrrev_b32 v{T+5}, 1, v{T+2}")
    e(f"v_lshlrev_b32 v{T+5}, 6, v{T+5}")
    e(f"v_lshlrev_b32 v{T+6}, 5, v{T+4}")
    e(f"v_add_u32 v{T+5}, v{T+5}, v{T+6}")
    e(f"v_lshlrev_b32 v{T+6}, 3, v{T+3}")
    e(f"v_add_u32 v{T+5}, v{T+5}, v{T+6}")
    e(f"v_lshlrev_b32 v{T+6}, 7, v{T+2}")
    e(f"v_add_u32 v{T+5}, v{T+5}, v{T+6}")
    e(f"v_lshlrev_b32 v{T+6}, 10, v{T}")
    e(f"v_add_u32 v{V_TR}, v{T+5}, v{T+6}")
    e(f"v_xor_b32 v{V_TR+1}, 64, v{V_TR}")
    for b in (1, 2):
        e(f"v_add_u32 v{V_TR+2*b}, {b*65536}, v{V_TR}")
        e(f"v_add_u32 v{V_TR+2*b+1}, {b*65536}, v{V_TR+1}")
    e(f"v_lshlrev_b32 v{V_BOFF}, 1, v{T+1}")
    e(f"v_mov_b32 v{T+5}, 0x7ffffff0")
    e("v_cmp_gt_u32 vcc, 32, v0")
    e("s_nop 1")
    e(f"v_cndmask_b32 v{V_BOFF}, v{T+5}, v{V_BOFF}, vcc")
    e(f"v_mov_b32 v{T+5}, 0x3f80")
    e(f"v_cndmask_b32 v{V_BB}, 0, v{T+5}, vcc")
    for r in (V_BB+1, V_BB+2, V_BB+3, V_BA+1, V_BA+2, V_BA+3, V_BA+5, V_BA+6, V_BA+7):
        e(f"v_mov_b32 v{r}, 0")
    e(f"v_lshlrev_b32 v{V_OOFF}, 11, v{T+1}")
    e(f"v_lshlrev_b32 v{T+6}, 4, v{T}")
    e(f"v_add_u32 v{V_OOFF}, v{V_OOFF}, v{T+6}")
    e(f"v_lshrrev_b32 v{T+5}, 4, v0")
    e(f"v_and_b32 v{T+6}, 15, v0")
    e(f"v_xor_b32 v{T+6}, v{T+6}, v{T+5}")
    e(f"v_lshlrev_b32 v{T+5}, 11, v{T+5}")
    for i in range(4):
        e(f"v_xor_b32 v{T+7}, {4*i}, v{T+6}")
        e(f"v_lshlrev_b32 v{T+7}, 4, v{T+7}")
        e(f"v_add_u32 v{T+7}, v{T+7}, v{T+5}")
        e(f"v_add_u32 v{V_XD+i}, {i*(8192-1024)}, v{T+7}")
    e(f"v_and_b32 v{T+5}, 15, v{T+1}")
    e(f"v_xor_b32 v{T+6}, v{T+5}, v{T}")
    e(f"v_lshlrev_b32 v{T+6}, 4, v{T+6}")
    e(f"v_lshlrev_b32 v{T+7}, 8, v{T+1}")
    e(f"v_add_u32 v{T+7}, s{S_LDSW}, v{T+7}")
    e(f"v_add_u32 v{T+7}, {3*UNIT}, v{T+7}")
    e(f"v_add_u32 v{T+6}, v{T+6}, v{T+7}")
    for jj in range(8):
        e(f"v_xor_b32 v{V_XR+jj}, {32*jj}, v{T+6}")
    e(f"v_lshlrev_b32 v{T+5}, 4, v{T+5}")
    e(f"v_add_u32 v{V_OWR}, v{T+5}, v{T+7}")
    e(f"v_lshlrev_b32 v{T+5}, 3, v{T}")
    e(f"v_add_u32 v{V_OWR}, v{V_OWR}, v{T+5}")
    e(f"v_lshrrev_b32 v{V_TCH}, 4, v0")
    e(f"v_lshlrev_b32 v{V_TCH}, 11, v{V_TCH}")
    e(f"v_and_b32 v{T+5}, 15, v0")
    e(f"v_lshlrev_b32 v{T+5}, 7, v{T+5}")
    e(f"v_add_u32 v{V_TCH}, v{V_TCH}, v{T+5}")
    e(f"s_lshr_b32 s70, s2, 3")
    e(f"s_lshl_b32 s70, s70, 2")
    e(f"s_add_u32 s70, s70, s{S_WV}")
    e(f"s_lshl_b32 s70, s70, 14")
    e(f"s_mov_b32 s{S_TW}, s70")
    e(f"s_add_u32 s{S_TW+1}, s{S_TW}, {2<<20}")
    e(f"s_add_u32 s{S_TW+2}, s{S_TW}, {4<<20}")

    e("s_waitcnt lgkmcnt(0)")
    for (S, lo, size) in ((S_X0, 44, 8 << 20), (S_W, 46, 6 << 20), (S_B, 48, 6144), (S_OUT, 50, 8 << 20),
                          (S_DBG, 64, 256), (S_WS, 66, 256 << 20)):
        e(f"s_mov_b32 s{S}, s{lo}")
        e(f"s_and_b32 s{S+1}, s{lo+1}, 0xffff")
        e(f"s_mov_b32 s{S+2}, {size}")
        e(f"s_mov_b32 s{S+3}, 0x00020000")
    V_ST = 53
    stamp_n = [0]
    def stamp(kind=0):
        if not OPT["STAMP"]:
            return
        if OPT["STAMP"] == 9:
            if kind != 9:
                return
        elif (OPT["STAMP"] == 3) != (kind == 3):
            return
        if kind in (3, 9):
            e(f"s_memrealtime s[{S_TS}:{S_TS+1}]")
        else:
            e(f"s_memtime s[{S_TS}:{S_TS+1}]")
        e("s_waitcnt lgkmcnt(0)")
        g.ldsq = []
        e(f"v_writelane_b32 v{V_ST}, s{S_TS}, {stamp_n[0]}")
        stamp_n[0] += 1
    if OPT["STAMP"]:
        e(f"v_mov_b32 v{V_ST}, 0")
    stamp()
    stamp(3)
    stamp(9)
    if OPT["TOUCH"] & 2:
        e(f"v_lshlrev_b32 v{V_T64}, 6, v0")

    m0_cur = [None]
    soff_cur = {}
    def set_m0(val):
        if m0_cur[0] != val:
            e(f"s_add_u32 m0, s{S_LDSW}, {val}")
            m0_cur[0] = val
            return True
        return False
    def set_soff(sreg, base, const):
        if soff_cur.get(sreg) != (base, const):
            e(f"s_add_u32 s{sreg}, s{base}, {const}")
            soff_cur[sreg] = (base, const)
            return True
        return False

    def w_dma(beta):
        l, b = divmod(beta, 8)
        P, q = ORD[l][b]
        unit = unit_of(beta)
        out = []
        for part in range(2):
            if l == 0:
                const = P * 128 + part * 65536
                base = S_W0Q + q
            else:
                const = l * (2 << 20) + q * 32 * 2048 + P * 128
                base = S_WROW + part
            for i in range(4):
                off = f" offset:{i*1024}" if i else ""
                def pre(part=part, base=base, const=const):
                    a = set_m0(unit*UNIT + part*4096)
                    b_ = set_soff(S_T, base, const)
                    return a and not b_
                def post(i=i, off=off):
                    g.vm(f"buffer_load_dwordx4 v{V_WD+i}, s[{S_W}:{S_W+3}], s{S_T} offen{off} lds", ("w", beta))
                out.append((pre, post))
        return out

    def x0_dma(unit, n, tag, first_wait=None):
        out = []
        for half in range(2):
            for i in range(4):
                off = f" offset:{i*1024}" if i else ""
                def pre(i=i, half=half):
                    if first_wait is not None and i == 0 and half == 0:
                        g.wait(lds=first_wait)
                    a = set_m0(unit*UNIT + half*4096)
                    b_ = set_soff(S_T+7, S_XPG+n, half*16*2048)
                    return a and not b_
                def post(i=i, off=off):
                    g.vm(f"buffer_load_dwordx4 v{V_XD+i}, s[{S_X0}:{S_X0+3}], s{S_T+7} offen{off} lds", tag)
                out.append((pre, post))
        return out

    def runv(ops):
        for pre, post in ops:
            if pre():
                e("s_nop 0")
            post()

    def x0_read_ops(unit, q, half, tag):
        ops = [lambda: g.wait(vm=tag)]
        for jj in range(8):
            j = 4 * half + jj // 2
            s_ = jj % 2
            base = unit * UNIT - 3 * UNIT
            if base >= 0:
                ops.append(lambda j=j, s_=s_, jj=jj, base=base: g.lds(
                    f"ds_read_b128 {xf_reg(q, j, s_)}, v{V_XR+jj} offset:{base}", ("x0r", tag)))
            else:
                def f(j=j, s_=s_, jj=jj, base=base):
                    e(f"v_add_u32 v{V_T0}, {base}, v{V_XR+jj}")
                    g.lds(f"ds_read_b128 {xf_reg(q, j, s_)}, v{V_T0}", ("x0r", tag))
                ops.append(f)
        return ops

    def run(ops):
        for op in ops:
            op()

    def bias_load(l, i):
        g.vm(f"buffer_load_ushort v{V_BA+4*(i%2)}, v{V_BOFF}, s[{S_B}:{S_B+3}], s{S_T+1+l} offen offset:{64*i}", ("b", l, i))

    def bias_mfma(l, i):
        g.wait(vm=("b", l, i))
        a = ACC + 16 * i
        ba = V_BA + 4 * (i % 2)
        e(f"v_mfma_f32_32x32x16_bf16 v[{a}:{a+15}], v[{ba}:{ba+3}], v[{V_BB}:{V_BB+3}], 0")

    def touch_w(l):
        for k in range(4):
            e(f"s_add_u32 s70, s{S_TW+l}, {4096*k}")
            g.vm(f"buffer_load_dword v{V_DUM+k}, v{V_T64}, s[{S_W}:{S_W+3}], s70 offen", "touch")

    def touch_slow(l):
        g.vm(f"buffer_load_dword v{V_DUM+2}, v{V_TSL}, s[{S_W}:{S_W+3}], s{S_TW+l} offen", "touch")
    if OPT["TOUCH"] & 16:
        e(f"v_lshrrev_b32 v{V_TSL}, 2, v0")
        e(f"v_lshlrev_b32 v{V_TSL}, 11, v{V_TSL}")
        e(f"v_and_b32 v{V_T0}, 2, v0")
        e(f"v_lshlrev_b32 v{V_T0}, 9, v{V_T0}")
        e(f"v_add_u32 v{V_TSL}, v{V_TSL}, v{V_T0}")
        e(f"v_and_b32 v{V_T0}, 1, v0")
        e(f"v_lshlrev_b32 v{V_T0}, 6, v{V_T0}")
        e(f"v_add_u32 v{V_TSL}, v{V_TSL}, v{V_T0}")
        e(f"v_add_u32 v{V_TSL}, 384, v{V_TSL}")
        e(f"v_mov_b32 v{V_T0}, 0x7ffffff0")
        e("v_cmp_gt_u32 vcc, 32, v0")
        e("s_nop 1")
        e(f"v_cndmask_b32 v{V_TSL}, v{V_T0}, v{V_TSL}, vcc")
        touch_slow(0)
    for l in range(3):
        e(f"s_add_u32 s{S_T+1+l}, s{S_BOFF}, {l*2048}")
    bias_load(0, 0)
    bias_load(0, 1)
    runv(w_dma(0))
    PG = {(0, 0): 3, (0, 1): 4, (1, 0): 2, (1, 1): 3, (2, 0): 4, (2, 1): 3, (3, 0): 4, (3, 1): 3}
    def ptag(q, h):
        return ("x0", q, h)
    runv(x0_dma(3, 0, ptag(0, 0)))
    stamp(3)
    e(f"v_mov_b32 v{V_FZ+1}, 0")
    g.vm(f"buffer_store_dword v{V_FZ+1}, v{V_FZ}, s[{S_WS}:{S_WS+3}], 0 offen sc1", "fz")
    def gtouch(l):
        g.vm(f"buffer_load_dword v{V_DUM}, v{V_GT}, s[{S_W}:{S_W+3}], s{S_GT+l} offen", "touch")
    if OPT["TOUCH"] & 4:
        e(f"v_lshlrev_b32 v{V_GT}, 6, v0")
        e(f"v_mov_b32 v{V_T0}, 0x7ffffff0")
        e("v_cmp_gt_u32 vcc, 32, v0")
        e(f"s_lshl_b32 s70, s2, 2")
        e(f"v_cndmask_b32 v{V_GT}, v{V_T0}, v{V_GT}, vcc")
        e(f"s_add_u32 s70, s70, s{S_WV}")
        e(f"s_lshl_b32 s{S_GT}, s70, 11")
        e(f"s_add_u32 s{S_GT+1}, s{S_GT}, {2<<20}")
        e(f"s_add_u32 s{S_GT+2}, s{S_GT}, {4<<20}")
        for l in range(3):
            if OPT["GT"+str(l)] < 0:
                gtouch(l)
    if OPT["TOUCH"] & 8:
        e(f"s_lshl_b32 s70, s{S_C}, 2")
        e(f"s_add_u32 s70, s70, s{S_WV}")
        e(f"s_lshl_b32 s70, s70, 13")
        e(f"s_lshl_b32 s71, s{S_RB}, 18")
        e(f"s_add_u32 s70, s70, s71")
        g.vm(f"buffer_load_dword v{V_DUM+2}, v{V_TCH}, s[{S_X0}:{S_X0+3}], s70 offen", "touch")
    if OPT["TOUCH"] & 1:
        e(f"s_lshl_b32 s70, s{S_C}, 2")
        e(f"s_add_u32 s70, s70, s{S_WV}")
        e(f"s_lshl_b32 s70, s70, 13")
        e(f"s_lshl_b32 s71, s{S_RB}, 18")
        e(f"s_add_u32 s70, s70, s71")
        g.vm(f"buffer_load_dword v{V_DUM+2}, v{V_TCH}, s[{S_X0}:{S_X0+3}], s70 offen", "touch")
        touch_w(0)
    runv(x0_dma(4, 1, ptag(0, 1)))
    runv(x0_dma(2, 2, ptag(1, 0)))
    runv(w_dma(1))
    if OPT["WARM"]:
        e(f"s_add_u32 s70, s{S_XOFF}, {XB[1]}")
        g.vm(f"buffer_load_dword v{V_DUM+3}, v{V_LANE16}, s[{S_WS}:{S_WS+3}], s70 offen", "touch")
        e(f"s_add_u32 s70, s{S_XOFF}, {XB[2]}")
        g.vm(f"buffer_load_dword v{V_DUM+3}, v{V_LANE16}, s[{S_WS}:{S_WS+3}], s70 offen", "touch")
        g.vm(f"buffer_load_dword v{V_DUM+3}, v{V_LANE16}, s[{S_OUT}:{S_OUT+3}], s{S_OUTOFF} offen", "touch")
    stamp()
    stamp(3)
    g.wait(vm=("w", 0))
    stamp(3)
    g.wait(vm=ptag(0, 0))
    stamp(3)
    run(x0_read_ops(3, 0, 0, ptag(0, 0)))
    for pc in range(16):
        i, gg = divmod(pc, 4)
        r = X0F + i * 16 + gg * 4
        e(f"v_xor_b32 v{V_T0}, {16*pc}, v{V_OWR}")
        g.lds(f"ds_read_b64 v[{r+2}:{r+3}], v{V_T0}", ("own", pc))
    if not OPT["INSTR"]:
        for pc in range(16):
            i, gg = divmod(pc, 4)
            r = X0F + i * 16 + gg * 4
            g.wait(lds=("own", pc))
            if pc == 15:
                runv(x0_dma(3, 3, ptag(1, 1)))
            e(f"v_lshlrev_b32 v{r}, 16, v{r+2}")
            e(f"v_and_b32 v{r+1}, s{S_MASK}, v{r+2}")
            e(f"v_lshlrev_b32 v{r+2}, 16, v{r+3}")
            e(f"v_and_b32 v{r+3}, s{S_MASK}, v{r+3}")
        stamp()
        stamp(3)
    else:
        g.wait(lds=("own", 15))
        runv(x0_dma(3, 3, ptag(1, 1)))
        stamp()
    e("s_barrier")
    stamp(3)

    fill = defaultdict(list)
    fill2 = defaultdict(list)
    used = defaultdict(int)
    CAP = OPT["CAP"]
    for t in range(NT + 200):
        used[t] = 2 + (1 if t % 2 == 0 else 0) if t < NT else 0
        if t % OPT["R"] == 1 % OPT["R"] and t < NT - 64:
            used[t] += 2

    def at(t, op, cost=1):
        fill[t].append(op)
        used[t] += cost

    def chain(t0, ops, cap=None):
        t = t0
        c = cap if cap is not None else CAP
        for op in ops:
            while used[t] >= c:
                t += 1
            at(t, op)
        return t + 1

    vmq = defaultdict(list)
    def vsched(cls, earliest, deadline, ops, hard):
        for n, (pre, post) in enumerate(ops):
            dl = deadline[n] if isinstance(deadline, (list, tuple)) else deadline
            hd = hard[n] if isinstance(hard, (list, tuple)) else hard
            vmq[cls].append((earliest, dl, pre, post, hd))

    mf = [None] * NT
    first_use = {}
    last_use = {}
    done = {}
    start = {}
    seen = set()
    use_t = {}
    for beta in range(NBLK):
        l, b = divmod(beta, 8)
        P, q = ORD[l][b]
        firstq = (l, q) not in seen
        seen.add((l, q))
        lastP = all(ORD[l][bb][0] != P for bb in range(b + 1, 8))
        inter = firstq and (not lastP or OPT["INTER_LAST"])
        if inter:
            seq = [(ns, j, s_) for j in range(8) for ns in range(2) for s_ in range(2)]
        else:
            seq = [(ns, j, s_) for ns in range(2) for j in range(8) for s_ in range(2)]
        for n, (ns, j, s_) in enumerate(seq):
            i = 2 * P + ns
            t = beta * 32 + n
            mf[t] = (l, beta, P, q, ns, i, j, s_)
            first_use.setdefault((l, q), t)
            use_t.setdefault((l, q, j, s_), t)
            last_use[(l, q)] = t
            done[(l, i)] = t
            start.setdefault((l, i), t)
    LAT = OPT["LAT"]
    if OPT["INSTR"]:
        ops = []
        for pc in range(16):
            i, gg = divmod(pc, 4)
            r = X0F + i * 16 + gg * 4
            ops.append(lambda r=r: e(f"v_lshlrev_b32 v{r}, 16, v{r+2}"))
            ops.append(lambda r=r: e(f"v_and_b32 v{r+1}, s{S_MASK}, v{r+2}"))
            ops.append(lambda r=r: e(f"v_lshlrev_b32 v{r+2}, 16, v{r+3}"))
            ops.append(lambda r=r: e(f"v_and_b32 v{r+3}, s{S_MASK}, v{r+3}"))
        chain(20, ops)
    for l in range(3):
        for i in range(4):
            ts = start[(l, i)]
            fill[ts].insert(0, lambda l=l, i=i: bias_mfma(l, i))
            used[ts] += 3
            if not (l == 0 and i < 2):
                pl, pi = (l, i - 2) if i >= 2 else (l - 1, i + 2)
                tl = max(start[(pl, pi)] + 2, ts - 48)
                at(tl, lambda l=l, i=i: bias_load(l, i))
    BPOS = OPT["BPOS"]
    for beta in range(NBLK):
        t = beta * 32 + BPOS
        if beta + 1 < NBLK:
            if beta == 1:
                at(t, lambda: g.wait(vm="fz"))
            at(t, lambda beta=beta: g.wait(vm=("w", beta + 1)))
            at(t, lambda: e("s_barrier"))
            if beta == 1:
                at(t, lambda: g.vm(f"buffer_atomic_add v{V_ONE}, v{V_ATOM}, s[{S_DBG}:{S_DBG+3}], 0 offen sc1", "atom"))
        if beta <= 3:
            nxt = [beta + 2]
        elif beta == 4:
            nxt = [6, 7, 8]
        else:
            nxt = [beta + 4]
        for nb in nxt:
            if nb < NBLK and not OPT["NOW"]:
                vsched("w", t + 1, 32 * (nb - 1) + BPOS - OPT["LATW"], w_dma(nb), 32 * (nb - 1) + BPOS - 1)
    def stage(t, q, h, nxt, tnext=None):
        tag = ptag(q, h)
        u = PG[(q, h)]
        t = chain(t, x0_read_ops(u, q, h, tag))
        if nxt is not None:
            n = 2 * nxt[0] + nxt[1]
            vsched("x0", t, tnext - LAT, x0_dma(u, n, ptag(*nxt), first_wait=("x0r", tag)), tnext - 1)
    ST = {(0, 1): 2, (1, 0): 8, (1, 1): 34, (2, 0): 56, (2, 1): 90, (3, 0): 112, (3, 1): 132}
    stage(ST[(0, 1)], 0, 1, (2, 0), ST[(2, 0)])
    stage(ST[(1, 0)], 1, 0, None)
    stage(ST[(1, 1)], 1, 1, (2, 1), ST[(2, 1)])
    stage(ST[(2, 0)], 2, 0, (3, 0), ST[(3, 0)])
    stage(ST[(2, 1)], 2, 1, (3, 1), ST[(3, 1)])
    stage(ST[(3, 0)], 3, 0, None)
    stage(ST[(3, 1)], 3, 1, None)
    if OPT["TOUCH"] & 4:
        for l in range(3):
            if OPT["GT"+str(l)] >= 0:
                at(OPT["GT"+str(l)], lambda l=l: gtouch(l))
    if OPT["TOUCH"] & 16:
        at(OPT["TS1"], lambda: touch_slow(1))
        at(OPT["TS2"], lambda: touch_slow(2))
    if OPT["TOUCH"] & 2:
        at(OPT["TW1"], lambda: touch_w(1), 8)
        at(OPT["TW2"], lambda: touch_w(2), 8)
    def switch_tr():
        e(f"v_lshrrev_b32 v{V_T0}, 5, v0")
        e(f"v_lshlrev_b32 v{V_T0}, 9, v{V_T0}")
        for k in range(6):
            e(f"v_sub_u32 v{V_TR+k}, v{V_TR+k}, v{V_T0}")
    switch_at = 256 - D

    def epi_ops(l, i, dst):
        ops = []
        for d in range(8):
            a0 = ACC + i * 16 + 2 * d
            x0 = X0F + i * 16 + 2 * d
            src = OWN + i * 8 + d
            t0 = V_ET + (d % 4) * 2
            if l == 0:
                ops.append(lambda a0=a0, x0=x0, t0=t0: e(f"v_fma_f32 v{t0}, v{x0}, v{a0}, v{x0}"))
                ops.append(lambda a0=a0, x0=x0, t0=t0: e(f"v_fma_f32 v{t0+1}, v{x0+1}, v{a0+1}, v{x0+1}"))
            else:
                ops.append(lambda src=src, t0=t0: e(f"v_lshlrev_b32 v{t0}, 16, v{src}"))
                ops.append(lambda src=src, t0=t0: e(f"v_and_b32 v{t0+1}, s{S_MASK}, v{src}"))
                ops.append(lambda a0=a0, x0=x0, t0=t0: e(f"v_fma_f32 v{t0}, v{x0}, v{a0}, v{t0}"))
                ops.append(lambda a0=a0, x0=x0, t0=t0: e(f"v_fma_f32 v{t0+1}, v{x0+1}, v{a0+1}, v{t0+1}"))
            ops.append(lambda t0=t0, d=d: e(f"v_cvt_pk_bf16_f32 v{dst+d}, v{t0}, v{t0+1}"))
        return ops

    def ready_issue():
        e(f"s_lshl_b32 s{S_T+5}, s{S_RB}, 2")
        e(f"v_mov_b32 v{V_RDY+1}, s{S_T+5}")
        g.vm(f"buffer_load_dword v{V_RDY}, v{V_RDY+1}, s[{S_DBG}:{S_DBG+3}], 0 offen sc1", "rdy")

    def ready_check():
        g.wait(vm="rdy")
        g.label("L_rdy")
        e(f"v_readfirstlane_b32 s70, v{V_RDY}")
        e("s_nop 3")
        e("s_lshr_b32 s71, s70, 4")
        e("s_and_b32 s71, s71, 0x0f0f0f0f")
        e("s_and_b32 s72, s70, 0x0f0f0f0f")
        e("s_add_u32 s71, s71, s72")
        e("s_mul_i32 s71, s71, 0x01010101")
        e("s_lshr_b32 s71, s71, 24")
        e("s_cmp_lg_u32 s71, 8")
        e("s_cbranch_scc1 L_rdy_slow")
        g.label("L_rdy_out")
        e(f"s_cmp_eq_u32 s70, s{S_XCC}")
        e(f"s_cselect_b32 s{S_FAST}, {OPT['FAST']}, 0")
        slow.append(f"""L_rdy_slow:
    s_sub_u32 s74, s74, 1
    s_cbranch_scc1 L_rdy_out
    buffer_load_dword v{V_RDY}, v{V_RDY+1}, s[{S_DBG}:{S_DBG+3}], 0 offen sc1
    s_waitcnt vmcnt(0)
    s_branch L_rdy""")

    flag_t = {}
    prev_epi_end = 0
    for l in range(3):
        for i in sorted(range(4), key=lambda i: done[(l, i)]):
            tc = max(done[(l, i)] + 5, prev_epi_end)
            own_last = max(t for t in range(l * 256, l * 256 + 256) if mf[t][3] == i and mf[t][6] == 0)
            direct = own_last < tc
            TM = TMPN if i % 2 == 0 else TMPN2
            dst = OWN + i * 8 if direct else TM
            tend = chain(tc, epi_ops(l, i, dst), cap=CAP + (OPT["EPI_PRI"] if l < 2 else OPT["EPI_LAST"]))
            prev_epi_end = tend
            if l < 2:
                assert tend <= start[(l + 1, i)], (l, i, tend, start[(l + 1, i)])
                assert tend <= use_t[(l + 1, i, 0, 0)], (l, i, tend)
            if l < 2:
                voff = V_LANE16 if i < 2 else V_LANE16B
                def st(dst=dst, voff=voff, l=l, i=i):
                    uid = f"{l}_{i}"
                    stamp(3)
                    set_soff(S_T+4, S_XOFF, XB[l+1])
                    e(f"s_cmp_lg_u32 s{S_FAST}, 0")
                    e(f"s_cbranch_scc0 L_ss{uid}")
                    for s_ in range(2):
                        r = dst + 4 * s_
                        off = (i % 2) * 2048 + s_ * 1024
                        g.vm(f"buffer_store_dwordx4 v[{r}:{r+3}], v{voff}, s[{S_WS}:{S_WS+3}], s{S_T+4} offen offset:{off}", ("st", l, i))
                    g.label(f"L_sj{uid}")
                    body = "".join(f"    buffer_store_dwordx4 v[{dst+4*s_}:{dst+4*s_+3}], v{voff}, s[{S_WS}:{S_WS+3}], s{S_T+4} offen offset:{(i%2)*2048+s_*1024} sc1\n" for s_ in range(2))
                    slow.append(f"""L_ss{uid}:
{body}    s_branch L_sj{uid}""")
                at(tend, st, 4)
                tf = tend + OPT["FLAG_DELAY"]
                flag_t[(l, i)] = tf
                def fl(l=l, i=i):
                    uid = f"{l}_{i}"
                    if OPT["NOPOLL"]:
                        return
                    stamp(3)
                    g.wait(vm=("st", l, i))
                    stamp(3)
                    e(f"v_mov_b32 v{V_T0+1}, {l+1}")
                    e(f"s_cmp_lg_u32 s{S_FAST}, 0")
                    e(f"s_cbranch_scc0 L_fs{uid}")
                    g.vm(f"buffer_store_dword v{V_T0+1}, v{V_FLAGST}, s[{S_WS}:{S_WS+3}], 0 offen offset:{32*i}", "fl")
                    g.label(f"L_fj{uid}")
                    slow.append(f"""L_fs{uid}:
    buffer_store_dword v{V_T0+1}, v{V_FLAGST}, s[{S_WS}:{S_WS+3}], 0 offen offset:{32*i} sc1
    s_branch L_fj{uid}""")
                at(tf, fl, 5)
                if l == 0 and tc == min(done[(0, k)] for k in range(4)) + 5:
                    at(tc - 50, ready_issue, 3)
                    at(tc - 4, ready_check, 12)
                if not direct:
                    tm = max(own_last + 1, tend + 1)
                    tmv = chain(tm, [lambda d=d, i=i, TM=TM: e(f"v_mov_b32 v{OWN+i*8+d}, v{TM+d}") for d in range(8)])
                    assert tmv + 1 <= use_t[(l + 1, i, 0, 0)], (l, i, tmv)
            else:
                for s_ in range(2):
                    r = dst + 4 * s_
                    at(tend + 1, lambda r=r: (e("s_nop 1"), e(f"v_permlane32_swap_b32 v{r}, v{r+2}"), e(f"v_permlane32_swap_b32 v{r+1}, v{r+3}")), 3)
                    at(tend + 2, lambda r=r, s_=s_, i=i: g.vm(
                        f"buffer_store_dwordx4 v[{r}:{r+3}], v{V_OOFF}, s[{S_OUT}:{S_OUT+3}], s{S_OUTOFF} offen offset:{64*i+32*s_}{OUTF}", "out"))
    pid = 0
    for l in (1, 2):
        for q in range(4):
            tfu = first_use[(l, q)]
            tfree = last_use[(l - 1, q)] + 1
            tchk = max(tfu - OPT["XLEAD"], tfree, flag_t[(l - 1, q)] + OPT["FLAG_VIS"] + OPT["POLL_CHK"])
            tp = tchk - OPT["POLL_CHK"]
            pid += 1

            def poll_issue(q=q, pid=pid):
                g.vm(f"buffer_load_dword v{V_POLL}, v{V_POLLOFF}, s[{S_WS}:{S_WS+3}], 0 offen offset:{32*q} sc1", ("poll", pid))

            def poll_check(l=l, q=q, pid=pid):
                if OPT["NOPOLL"]:
                    return
                stamp(3)
                g.wait(vm=("poll", pid))
                stamp(3)
                e(f"v_cmp_gt_u32 s[{S_VCC}:{S_VCC+1}], {l}, v{V_POLL}")
                e("s_nop 3")
                e(f"s_cmp_lg_u64 s[{S_VCC}:{S_VCC+1}], 0")
                e(f"s_cbranch_scc1 L_slow{pid}")
                g.label(f"L_back{pid}")
                stamp(3)
                slow.append(f"""L_slow{pid}:
    buffer_load_dword v{V_POLL}, v{V_POLLOFF}, s[{S_WS}:{S_WS+3}], 0 offen offset:{32*q} sc1
    s_waitcnt vmcnt(0)
    v_cmp_gt_u32 s[{S_VCC}:{S_VCC+1}], {l}, v{V_POLL}
    s_sub_u32 s74, s74, 1
    s_cbranch_scc1 L_back{pid}
    s_nop 1
    s_cmp_lg_u64 s[{S_VCC}:{S_VCC+1}], 0
    s_cbranch_scc1 L_slow{pid}
    s_branch L_back{pid}""")
            at(tp, poll_issue)
            at(tchk, poll_check, 5)
            ops = []
            dls = []
            for j in range(1, 8):
                for s_ in range(2):
                    voff = V_LANE16 if q < 2 else V_LANE16B
                    off = (q % 2) * 2048 + s_ * 1024
                    def pre(l=l, j=j, s_=s_):
                        set_soff(S_T+6, S_XOFF+j, XB[l])
                        return False
                    def post(l=l, q=q, j=j, s_=s_, voff=voff, off=off):
                        g.vm(f"buffer_load_dwordx4 {xf_reg(q, j, s_)}, v{voff}, s[{S_WS}:{S_WS+3}], s{S_T+6} offen offset:{off} sc1",
                             ("x", l, q, j))
                    ops.append((pre, post))
                    dls.append(use_t[(l, q, j, s_)] - LAT)
            if not OPT["NOX"]:
                vsched("x", tchk + 1, dls, ops, [d + LAT - 1 for d in dls])

    heads = {c: 0 for c in vmq}
    last = -100
    late = []
    t = 0
    while any(heads[c] < len(vmq[c]) for c in vmq):
        cands = [(vmq[c][heads[c]][1], c) for c in vmq if heads[c] < len(vmq[c]) and vmq[c][heads[c]][0] <= t]
        if cands:
            dl, c = min(cands)
            if (t % OPT["R"] == 1 % OPT["R"]) or (dl <= t and t - last >= 1):
                ea, dl, pre, post, hd = vmq[c][heads[c]]
                assert t <= hd, ("hard deadline missed", c, t, hd)
                fill[t].append(pre)
                fill2[t].append(post)
                heads[c] += 1
                last = t
                if t > dl:
                    late.append((c, t, dl))
        t += 1
    if late:
        sys.stderr.write(f"late vm ops: {len(late)}  worst {max(x[1]-x[2] for x in late)}  first {late[:3]}\n")

    def wf_regs(t):
        return WF + (t % NWF) * 4

    def issue_reads(t):
        l, beta, P, q, ns, i, j, s_ = mf[t]
        unit = unit_of(beta)
        base = unit * UNIT
        vb = V_TR + 2 * (base >> 16) + ns
        b = wf_regs(t)
        for tt in range(2):
            if l == 0:
                off = (32 * j + 16 * s_ + 4 * tt) * 128
            else:
                off = (32 * j + 16 * s_ + 8 * tt) * 128
            off += base & 0xffff
            g.lds(f"ds_read_b64_tr_b16 v[{b+2*tt}:{b+2*tt+1}], v{vb} offset:{off}", ("wf", t))

    for t in range(D):
        issue_reads(t)
    for t in range(NT):
        if OPT["STAMP"] == 1 and t % 32 == 0:
            stamp()
        if OPT["STAMP"] == 3 and t % 32 == 0 and t < 190:
            stamp(3)
        if OPT["STAMP"] == 2 and OPT["ST0"] <= t < OPT["ST0"] + 56 * OPT["STEP"] and (t - OPT["ST0"]) % OPT["STEP"] == 0:
            stamp()
        for op in fill.get(t, []):
            op()
        if t == switch_at:
            switch_tr()
        if t + D < NT:
            issue_reads(t + D)
        for op in fill2.get(t, []):
            op()
        l, beta, P, q, ns, i, j, s_ = mf[t]
        vmtag = ("x", l, q, j) if (l > 0 and j > 0) else None
        ldtag = ("wf", t + 1) if (t % 2 == 0 and t + 1 < NT) else ("wf", t)
        if l == 0:
            xt = ("x0r", ptag(q, j // 4))
            if xt in g.ldsq:
                g.wait(lds=xt)
        g.wait(vm=vmtag, lds=ldtag)
        b = wf_regs(t)
        a = ACC + i * 16
        e(f"v_mfma_f32_32x32x16_bf16 v[{a}:{a+15}], v[{b}:{b+3}], {xf_reg(q, j, s_)}, v[{a}:{a+15}]")
    e("s_nop 15")
    for t in range(NT, NT + 200):
        if t in fill:
            for op in fill[t]:
                op()
    extra = [t for t in fill if t >= NT + 200]
    assert not extra, extra
    stamp()
    stamp(3)
    e("s_waitcnt vmcnt(0)")
    stamp()
    stamp(9)
    if OPT["STAMP"]:
        e(f"s_lshl_b32 s70, s2, 2")
        e(f"s_add_u32 s70, s70, s{S_WV}")
        e(f"s_lshl_b32 s70, s70, 8")
        e(f"s_add_u32 s70, s70, {1<<20}")
        e(f"v_lshlrev_b32 v{V_T0}, 2, v0")
        e(f"v_writelane_b32 v{V_ST}, s74, 63")
        e(f"v_writelane_b32 v{V_ST}, s{S_FAST}, 62")
        e(f"buffer_store_dword v{V_ST}, v{V_T0}, s[{S_WS}:{S_WS+3}], s70 offen")
        e("s_waitcnt vmcnt(0)")
    g.label("L_end")
    e("s_endpgm")
    for sl in slow:
        g.L.append(sl)
    g.label("L_codeend")
    g.L.append(""".section .rodata,"a"
.p2align 6
.amdhsa_kernel standalone__dcn_v2_cross__recsys_kernel
  .amdhsa_next_free_vgpr 512
  .amdhsa_next_free_sgpr 102
  .amdhsa_accum_offset 256
  .amdhsa_group_segment_fixed_size 0
  .amdhsa_kernarg_size 48
  .amdhsa_user_sgpr_count 2
  .amdhsa_user_sgpr_kernarg_segment_ptr 1
  .amdhsa_system_sgpr_workgroup_id_x 1
.end_amdhsa_kernel""")
    return "\n".join(g.L) + "\n"


if __name__ == "__main__":
    out = sys.argv[1] if len(sys.argv) > 1 else "standalone__dcn_v2_cross__recsys.s"
    open(out, "w").write(gen())
```
